```python
import torch

def _softmax(x, axis=-1):
    return torch.softmax(x, dim=axis)
def _gelu(x):
    return torch.nn.functional.gelu(x, approximate="tanh")
def _silu(x):
    return torch.nn.functional.silu(x)
def _sigmoid(x):
    return torch.sigmoid(x)
def _layernorm(x, axis=-1, eps=1e-5):
    m = x.mean(dim=axis, keepdim=True)
    v = x.var(dim=axis, keepdim=True, unbiased=False)
    return (x - m) / torch.sqrt(v + eps)
def _scatter_add(tgt, idx, src, axis=0):
    return tgt.clone().index_add_(axis, idx, src)
def _segment_sum(src, seg, n):
    out = torch.zeros((n,) + src.shape[1:], dtype=src.dtype)
    return out.index_add_(0, seg, src)
def _pad(x, pw):
    flat = tuple(v for pair in reversed(pw) for v in pair)
    return torch.nn.functional.pad(x, flat)

kernel_name = 'gated_mix__linear_kernel_hedgehog__grouped_kv_mqa__prompt'

def setup_inputs():

    _w = (lambda a: (lambda t: t.to(torch.bfloat16) if t.is_floating_point() else t)(torch.as_tensor(a)))
    def _A_setup():
        B, S, D, H = 1, 2048, 448, 16
        Dh = D // H
        return {
            "x": _w((lambda *s: torch.randn(*s, dtype=torch.bfloat16) * 0.05)(B, S, D)),
            "wqkv": _w((lambda *s: torch.randn(*s, dtype=torch.bfloat16) * 1.6)(D, 3 * D)),
            "w_phi": _w((lambda *s: torch.randn(*s, dtype=torch.bfloat16) * 1.6)(H, Dh, Dh) * (Dh ** -0.5)),
            "wo": _w((lambda *s: torch.randn(*s, dtype=torch.bfloat16) * 0.05)(D, D)),
        }
    _A_in = _A_setup()

    def _B_setup():
        B, S, D, H = 1, 2048, 448, 16
        Dh = D // H
        return {
            "x": _w((lambda *s: torch.randn(*s, dtype=torch.bfloat16) * 0.05)(B, S, D)),
            "wq": _w((lambda *s: torch.randn(*s, dtype=torch.bfloat16) * 1.6)(D, H * Dh)),
            "wk": _w((lambda *s: torch.randn(*s, dtype=torch.bfloat16) * 1.6)(D, Dh)),
            "wv": _w((lambda *s: torch.randn(*s, dtype=torch.bfloat16) * 0.05)(D, Dh)),
            "wo": _w((lambda *s: torch.randn(*s, dtype=torch.bfloat16) * 0.05)(H * Dh, D)),
        }
    _B_in = _B_setup()

    return {
        "A_x": _A_in["x"],
        "A_wqkv": _A_in["wqkv"],
        "A_w_phi": _A_in["w_phi"],
        "A_wo": _A_in["wo"],
        "B_x": _B_in["x"],
        "B_wq": _B_in["wq"],
        "B_wk": _B_in["wk"],
        "B_wv": _B_in["wv"],
        "B_wo": _B_in["wo"],
        "gate_w": _w((lambda *s: torch.randn(*s, dtype=torch.bfloat16) * 0.05)(448) * 16.0),
    }

def reference(A_x, A_wqkv, A_w_phi, A_wo, B_x, B_wq, B_wk, B_wv, B_wo, gate_w):
    def _A_ref(x, wqkv, w_phi, wo):
        B, S, D = x.shape
        H = 16; Dh = D // H
        qkv = (lambda x, *d: x.permute(*d))((x @ wqkv).reshape(B, S, 3, H, Dh), 2, 0, 3, 1, 4)
        q, k, v = qkv[0], qkv[1], qkv[2]
        pq = torch.einsum("bhsd,hdf->bhsf", q, w_phi)
        pk = torch.einsum("bhsd,hdf->bhsf", k, w_phi)
        phi_q = torch.concatenate([_softmax(pq, axis=-1), _softmax(-pq, axis=-1)], axis=-1)
        phi_k = torch.concatenate([_softmax(pk, axis=-1), _softmax(-pk, axis=-1)], axis=-1)
        kv = torch.einsum("bhsf,bhsd->bhfd", phi_k, v)
        z  = torch.einsum("bhsf->bhf", phi_k)
        num = torch.einsum("bhqf,bhfd->bhqd", phi_q, kv)
        den = torch.einsum("bhqf,bhf->bhq", phi_q, z)[..., None] + 1e-6
        o = num / den
        return (lambda x, *d: x.permute(*d))(o, 0, 2, 1, 3).reshape(B, S, D) @ wo

    def _B_ref(x, wq, wk, wv, wo):
        B, S, D = x.shape
        H = 16
        Dh = D // H
        q = (lambda x, *d: x.permute(*d))((x @ wq).reshape(B, S, H, Dh), 0, 2, 1, 3)
        k = x @ wk
        v = x @ wv
        scores = torch.einsum("bhqd,bkd->bhqk", q, k) * (Dh ** -0.5)
        p = _softmax(scores, axis=-1)
        o = torch.einsum("bhqk,bkd->bhqd", p, v)
        return (lambda x, *d: x.permute(*d))(o, 0, 2, 1, 3).reshape(B, S, H * Dh) @ wo

    x = A_x
    g = _sigmoid((x * gate_w).sum(-1, keepdims=True))
    a = _A_ref(x, A_wqkv, A_w_phi, A_wo)
    b = _B_ref(x, B_wq, B_wk, B_wv, B_wo)
    return g * a + (1 - g) * b
```

```python
import re

REG = re.compile(r'^(-|abs\()?([vsa])(\d+)\)?$')
RNG = re.compile(r'^(-)?([vsa])\[(\d+):(\d+)\]$')

def regs_of(op):
    op = op.strip()
    if op in ('vcc',): return {('s', 106), ('s', 107)}
    if op == 'vcc_lo': return {('s', 106)}
    if op == 'vcc_hi': return {('s', 107)}
    if op == 'exec': return {('s', 126), ('s', 127)}
    if op == 'm0': return {('s', 124)}
    m = REG.match(op)
    if m: return {(m.group(2), int(m.group(3)))}
    m = RNG.match(op)
    if m: return {(m.group(2), i) for i in range(int(m.group(3)), int(m.group(4)) + 1)}
    return set()

TRANS = ('v_exp_', 'v_log_', 'v_rcp_', 'v_rsq_', 'v_sqrt_', 'v_sin_', 'v_cos_')

class Ins:
    def __init__(self, text):
        self.text = text
        t = text.split(';')[0].strip()
        self.label = t.endswith(':')
        self.directive = t.startswith('.')
        self.mn = t.split()[0] if t else ''
        rest = t[len(self.mn):].strip()
        ops, depth, cur = [], 0, ''
        for ch in rest:
            if ch in '[(': depth += 1
            if ch in '])': depth -= 1
            if ch == ',' and depth == 0:
                ops.append(cur.strip()); cur = ''
            else: cur += ch
        if cur.strip(): ops.append(cur.strip())
        self.mods = ''
        if ops:
            last = ops[-1].split()
            ops[-1] = last[0]; self.mods = ' '.join(last[1:])
        self.ops = ops
        mn = self.mn
        self.is_mfma = mn.startswith('v_mfma') or mn.startswith('v_smfmac')
        self.is_valu = mn.startswith('v_') and not self.is_mfma
        self.is_trans = mn.startswith(TRANS)
        self.is_dot = mn.startswith('v_dot')
        self.is_vmem = mn.startswith(('buffer_', 'global_', 'flat_'))
        self.is_ds = mn.startswith('ds_')
        self.is_salu = mn.startswith('s_')
        self.is_branch = mn.startswith(('s_branch', 's_cbranch'))
        self.is_dpp = 'dpp' in mn or 'row_' in self.mods or 'quad_perm' in self.mods
        self.is_perml = mn.startswith('v_permlane')
        self.is_rdlane = mn.startswith(('v_readlane', 'v_readfirstlane'))
        self.is_ldsdma = self.is_vmem and (' lds' in ' ' + self.mods or '_lds_' in mn)
        self.passes = 0
        if self.is_mfma:
            self.passes = 8 if '32x32' in mn else 4
        R = [regs_of(o) for o in ops]
        w, r = set(), set()
        self.srcC = set(); self.srcAB = set(); self.sdata = set()
        if self.label or self.directive or not mn:
            pass
        elif self.is_mfma:
            w = R[0]
            if mn.startswith('v_smfmac'):
                self.srcC = R[0]; self.srcAB = R[1] | R[2] | R[3]
            else:
                self.srcC = R[3]; self.srcAB = R[1] | R[2]
            r = self.srcC | self.srcAB
        elif self.is_vmem:
            if 'store' in mn or ('atomic' in mn):
                for x in R: r |= x
                if mn.startswith('buffer_'): self.sdata = R[0]
                else: self.sdata = R[1]
                if not ('x3' in mn or 'x4' in mn): self.sdata = set()
            elif self.is_ldsdma:
                for x in R: r |= x
                r |= {('s', 124)}
            elif mn in ('buffer_inv', 'buffer_wbl2'):
                pass
            else:
                w = R[0]
                for x in R[1:]: r |= x
        elif self.is_ds:
            if mn.startswith(('ds_read', 'ds_bpermute', 'ds_permute', 'ds_swizzle')) or '_rtn' in mn:
                w = R[0]
                for x in R[1:]: r |= x
            else:
                for x in R: r |= x
        elif self.is_perml and 'swap' in mn:
            w = R[0] | R[1]; r = R[0] | R[1]
        elif self.is_valu:
            w = set(R[0])
            start = 1
            if '_co_' in mn or mn.startswith('v_div_scale') or mn.startswith('v_mad_u64'):
                w |= R[1]; start = 2
            for x in R[start:]: r |= x
            if mn.startswith(('v_fmac', 'v_dot2c', 'v_pk_fmac', 'v_writelane')) or 'UNUSED_PRESERVE' in self.mods or self.is_dpp:
                r |= R[0]
            if mn.startswith('v_cmpx'): w |= regs_of('exec')
        elif self.is_salu:
            if mn.startswith(('s_cmp', 's_waitcnt', 's_nop', 's_barrier', 's_sleep', 's_setprio', 's_endpgm', 's_branch', 's_cbranch', 's_bitcmp')):
                for x in R: r |= x
            else:
                w = set(R[0]) if R else set()
                for x in R[1:]: r |= x
                if 'saveexec' in mn: w |= regs_of('exec'); r |= regs_of('exec')
        self.w, self.r = w, r
        self.states = 1
        if mn == 's_nop': self.states = int(ops[0], 0) + 1
        if self.label or self.directive or not mn: self.states = 0

def vg(s): return {x for x in s if x[0] in 'va'}
def sg(s): return {x for x in s if x[0] == 's'}

def need(p, c):
    n = 0
    if p.is_valu:
        pv, ps = vg(p.w), sg(p.w)
        if c.is_mfma and pv & c.r: n = max(n, 3 if p.is_dot else 2)
        if p.is_trans and (c.is_valu and not c.is_trans) and pv & c.r: n = max(n, 1)
        if c.is_perml and pv & c.r: n = max(n, 2)
        if c.is_dpp and pv & c.r: n = max(n, 2)
        if c.is_rdlane and pv & c.r: n = max(n, 1)
        if p.is_dot and c.is_valu and (pv & (c.r | c.w)):
            if c.mn == p.mn:
                ab = set()
                for o in c.ops[1:3]: ab |= regs_of(o)
                if pv & ab: n = max(n, 3)
            else: n = max(n, 3)
        if p.is_dot and (c.is_vmem or c.is_ds) and pv & c.r: n = max(n, 3)
        if ('sdwa' in p.mn or 'op_sel' in p.mods) and c.is_valu and pv & (c.r | c.w): n = max(n, 1)
        if ps:
            if (c.is_valu or c.is_mfma) and ps & c.r: n = max(n, 4 if c.mn.startswith(('v_readlane', 'v_writelane')) else 2)
            if c.is_vmem and ps & c.r: n = max(n, 5)
            if c.is_salu and ps & c.r: n = max(n, 1)
            if c.mn in ('s_cbranch_vccz', 's_cbranch_vccnz') and ps & regs_of('vcc'): n = max(n, 1)
    if p.is_salu and ('s', 124) in p.w and c.is_ldsdma: n = max(n, 1)
    if p.is_vmem and p.sdata and vg(c.w) & p.sdata: n = max(n, 2)
    if p.is_mfma:
        D = p.w
        big = {4: 8, 8: 12}[p.passes]
        if c.is_mfma:
            if D & c.srcAB: n = max(n, big)
            if D & c.srcC and not (c.srcC == D and c.passes == p.passes): n = max(n, {4: 6, 8: 10}[p.passes])
            if D & c.w and not (D & c.srcC) : n = max(n, 0)
        elif c.is_valu:
            if D & (c.r | c.w): n = max(n, big)
            if p.srcC & c.w: n = max(n, {4: 3, 8: 7}[p.passes])
        elif c.is_vmem or c.is_ds:
            if D & (c.r | c.w): n = max(n, big)
    return n

class Asm:
    def __init__(self):
        self.L = []
    def __call__(self, text):
        for line in text.split('\n'):
            line = line.strip()
            if line and not line.startswith(';'):
                self.L.append(Ins(line))
    def label(self, name): self.L.append(Ins(name + ':'))
    def _gap_need(self, hist, c):
        dist = 0; extra = 0
        for p in reversed(hist):
            if dist >= 20: break
            if p.states:
                n = need(p, c)
                if n > dist: extra = max(extra, n - dist)
                dist += p.states
        return extra
    def fix(self):
        out = []
        hist = []
        for c in self.L:
            if c.states:
                e = self._gap_need(hist, c)
                if e > 0:
                    nop = Ins(f's_nop {e-1}')
                    out.append(nop); hist.append(nop)
                hist.append(c)
                if c.mn in ('s_branch', 's_endpgm'): hist = []
                hist = hist[-24:]
            out.append(c)
        self.L = out
        labels = {c.mn[:-1]: i for i, c in enumerate(out) if c.label}
        problems = []
        for i, c in enumerate(out):
            if c.is_branch:
                tgt = labels.get(c.ops[0])
                if tgt is None: problems.append(f'unknown label {c.ops[0]}'); continue
                hist = []
                for p in reversed(out[:i + 1]):
                    if p.states: hist.append(p)
                    if len(hist) >= 24: break
                    if p is not c and p.mn in ('s_branch', 's_endpgm'): break
                hist.reverse()
                k = 0
                for q in out[tgt:]:
                    if not q.states: continue
                    e = self._gap_need(hist, q)
                    if e > 0: problems.append(f'edge hazard: {c.text} -> {q.text} needs {e} more')
                    hist.append(q); k += q.states
                    if k >= 20 or q.mn in ('s_branch', 's_endpgm'): break
        return problems
    def text(self):
        s = []
        for c in self.L:
            s.append(c.text if (c.label or c.directive) else '    ' + c.text)
        return '\n'.join(s) + '\n'
```

```python
import sys, struct, math
from asmdsl import Asm

NAME = "gated_mix__linear_kernel_hedgehog__grouped_kv_mqa__prompt"
STAMP = '--stamp' in sys.argv
OUT = [a for a in sys.argv[1:] if not a.startswith('--')]
OUT = OUT[0] if OUT else f"cdna_kernels/{NAME}.s"

def f2u(x): return struct.unpack('<I', struct.pack('<f', x))[0]
LOG2E = math.log2(math.e)
CQ = LOG2E / math.sqrt(28.0)

FKV, FRP, FL2, FL4, FL5 = 0x0, 0x8000, 0x10000, 0x20000, 0x40000
KV, WR, KVP, OA, OB, STP = 0x60000, 0x100000, 0x300000, 0x400000, 0x600000, 0x800000
WS_SIZE = 0x900000
L_X = 0
L_WQ = 114688
L_WKV = 126976
L_RP = 152576
L_MISC = 160768
L_WA = 0
L_PHI = 86016
L_VX = 104448
L_KVF = 143360
L_WPHI = 147456
L_QF = L_RP
L_WOA = 0
L_WOB = 57344
L_OX = 0
L_FR = 49152
C_WA, C_WAQ, C_S2, C_S3, C_KM = 0, 4, 8, 12, 16
M_NQ, M_G = 128, 640
LDS_BYTES = 163840
SPIN = 200000

a = Asm()
uid = [0]
def lab(p):
    uid[0] += 1
    return f"L_{p}_{uid[0]}"

def srd(r, lo, size):
    a(f"""s_mov_b32 s{r}, s{lo}
    s_mov_b32 s{r+1}, s{lo+1}
    s_mov_b32 s{r+2}, {size}
    s_mov_b32 s{r+3}, 0x00020000""")

def stamp(i):
    if STAMP:
        a(f"s_memrealtime s[98:99]\n s_waitcnt lgkmcnt(0)\n s_mov_b32 s{80+i}, s98")

def poll(vaddr, soff, vd, mask=None, srd_="s[48:51]"):
    L, D = lab("poll"), lab("polld")
    a("s_mov_b32 s70, 0")
    if mask is not None: a(f"s_mov_b64 exec, {mask}")
    a.label(L)
    a(f"""buffer_load_dword v{vd}, v{vaddr}, {srd_}, {soff} offen sc1
    s_waitcnt vmcnt(0)
    v_cmp_eq_u32 vcc, 0, v{vd}
    s_cbranch_vccz {D}
    s_mov_b64 exec, vcc
    s_sleep 1
    s_add_u32 s70, s70, 1
    s_cmp_lt_u32 s70, {SPIN}
    s_cbranch_scc1 {L}""")
    a.label(D)
    a("s_mov_b64 exec, -1")

V_MISC, V_ONE, V_L16, V_IDX = 242, 243, 241, 240
def lds_signal(c):
    a(f"""s_mov_b64 exec, 1
    ds_add_u32 v{V_MISC}, v{V_ONE} offset:{c}
    s_mov_b64 exec, -1""")
def lds_wait(c, target, vt=244, wide=False):
    L, D = lab("lw"), lab("lwd")
    a("s_mov_b32 s70, 0")
    a.label(L)
    if wide: a(f"ds_read_b64 v[{vt}:{vt+1}], v{V_MISC} offset:{c}")
    else: a(f"ds_read_b32 v{vt}, v{V_MISC} offset:{c}")
    a(f"""s_waitcnt lgkmcnt(0)
    v_readfirstlane_b32 s71, v{vt}
    s_cmp_ge_u32 s71, {target}
    s_cbranch_scc1 {D}
    s_sleep 1
    s_add_u32 s70, s70, 1
    s_cmp_lt_u32 s70, {SPIN*4}
    s_cbranch_scc1 {L}""")
    a.label(D)

def flag_store(soff_expr_sreg, vval):
    a(f"""v_mov_b32 v246, 0
    s_mov_b64 exec, 1
    buffer_store_dword v{vval}, v246, s[48:51], s{soff_expr_sreg} offen sc1
    s_mov_b64 exec, -1""")

def wait_go():
    a("v_mov_b32 v246, 0")
    poll(246, 0, 247, mask="1", srd_="s[60:63]")

def mrow(vd, vsrc, t0, t1):
    a(f"""v_mul_u32_u24 v{t0}, 37, v{vsrc}
    v_lshrrev_b32 v{t0}, 8, v{t0}
    v_mul_u32_u24 v{t1}, 7, v{t0}
    v_sub_u32 v{t1}, v{vsrc}, v{t1}
    v_cmp_eq_u32 vcc, 4, v{t0}
    v_cndmask_b32 v{t0}, v{t0}, v{t1}, vcc
    v_cndmask_b32 v{t1}, v{t1}, 7, vcc
    v_and_b32 v{vd}, 4, v{t1}
    v_add_u32 v{vd}, v{vd}, v{t1}
    v_and_b32 v{t1}, 1, v{t0}
    v_lshl_add_u32 v{vd}, v{t1}, 2, v{vd}
    v_lshrrev_b32 v{t0}, 1, v{t0}
    v_lshl_add_u32 v{vd}, v{t0}, 4, v{vd}""")

MF32 = "v_mfma_f32_32x32x16_bf16"
MF16 = "v_mfma_f32_16x16x32_bf16"
SMF = "v_smfmac_f32_32x32x32_bf16"
def vr(b, n): return f"v[{b}:{b+n-1}]"

if STAMP:
    for i in range(16): a(f"s_mov_b32 s{80+i}, 0")
stamp(0)
a("""s_load_dwordx16 s[16:31], s[0:1], 0
s_load_dwordx8 s[32:39], s[0:1], 64
s_load_dwordx2 s[40:41], s[0:1], 96
s_cmp_ge_u32 s2, 256
s_cbranch_scc1 L_end
v_lshrrev_b32 v2, 6, v0
v_and_b32 v1, 63, v0
v_readfirstlane_b32 s3, v2
s_and_b32 s8, s2, 7
s_lshr_b32 s9, s2, 3
s_lshr_b32 s4, s8, 1
s_lshl_b32 s4, s4, 2
s_and_b32 s10, s9, 3
s_add_u32 s4, s4, s10
s_and_b32 s5, s8, 1
s_lshl_b32 s5, s5, 3
s_lshr_b32 s10, s9, 2
s_add_u32 s5, s5, s10
s_lshr_b32 s6, s5, 1
s_and_b32 s7, s3, 3
s_mov_b32 s64, 0
s_mov_b32 s65, -1""")
a(f"""v_lshlrev_b32 v{V_L16}, 4, v1
v_mov_b32 v{V_MISC}, {L_MISC}
v_mov_b32 v{V_ONE}, 1
v_mov_b32 v{V_IDX}, 0xdddddddd""")
a("""v_lshrrev_b32 v5, 3, v1
v_mul_u32_u24 v5, 896, v5
v_lshrrev_b32 v6, 4, v1
v_and_b32 v7, 7, v1
v_xor_b32 v7, v7, v6
v_lshl_add_u32 v3, v7, 4, v5
v_xor_b32 v7, 4, v7
v_lshl_add_u32 v4, v7, 4, v5
v_add_u32 v4, 7168, v4""")
a("""s_add_u32 s10, s6, s3
s_add_u32 s10, s10, 4
s_and_b32 s10, s10, 7
s_lshl_b32 s11, s4, 3
s_add_u32 s11, s11, s10
s_mul_i32 s11, s11, 14336
s_lshl_b32 s12, s10, 11
s_waitcnt lgkmcnt(0)""")
srd(44, 16, 1835008)
srd(48, 40, WS_SIZE)
srd(60, 38, 256)
stamp(1)
def x_pair_loads():
    L = lab("xl")
    a("s_mov_b32 s13, 0")
    a.label(L)
    a("""s_mov_b32 m0, s12
    s_add_u32 s14, s12, 1024
    buffer_load_dwordx4 v3, s[44:47], s11 offen lds
    s_mov_b32 m0, s14
    s_add_u32 s12, s12, 16384
    buffer_load_dwordx4 v4, s[44:47], s11 offen lds
    s_add_u32 s11, s11, 128
    s_add_u32 s13, s13, 1
    s_cmp_lt_u32 s13, 7""")
    a(f"s_cbranch_scc1 {L}")

a("""s_cmp_eq_u32 s3, 4
s_cbranch_scc1 L_mini
s_cmp_eq_u32 s3, 5
s_cbranch_scc1 L_repack""")
a("""s_cmp_lg_u32 s3, 0
s_cbranch_scc1 L_noinit
v_mov_b32 v8, 0""")
a(f"""v_lshl_add_u32 v9, v1, 2, v{V_MISC}
s_mov_b64 exec, 0xffff
ds_write_b32 v9, v8
s_mov_b64 exec, -1
s_waitcnt lgkmcnt(0)""")
a.label("L_noinit")
a("""s_cmp_lg_u32 s3, 7
s_cbranch_scc1 L_nogo
s_cmp_lg_u32 s2, 0
s_cbranch_scc1 L_nogo
v_lshlrev_b32 v8, 7, v1
v_mov_b32 v9, 0
s_mov_b32 s13, 0""")
for i in range(8):
    a("buffer_store_dword v9, v8, s[48:51], s13 offen sc1\n s_add_u32 s13, s13, 8192")
a(f"""s_barrier
s_waitcnt vmcnt(0)
s_mov_b64 exec, 1
buffer_store_dword v{V_ONE}, v9, s[60:63], 0 offen sc1
s_mov_b64 exec, -1
s_branch L_bulk""")
a.label("L_nogo")
a("s_barrier")
a.label("L_bulk")
x_pair_loads()
a("""s_cmp_ge_u32 s3, 4
s_cbranch_scc1 L_bulk67""")
srd(52, 26, 401408)
a(f"""v_lshrrev_b32 v5, 2, v1
v_mul_u32_u24 v5, 896, v5
v_and_b32 v6, 3, v1
v_lshlrev_b32 v6, 4, v6
v_min_u32 v6, 40, v6
v_add_u32 v5, v5, v6
s_mul_i32 s13, s5, 56
s_mul_i32 s14, s7, {3*14336}
s_add_u32 s14, s14, s13
s_mul_i32 s15, s7, 3072
s_add_u32 s15, s15, {L_WQ}""")
for i in range(3):
    a(f"""s_mov_b32 m0, s15
    s_add_u32 s15, s15, 1024
    buffer_load_dwordx4 v5, s[52:55], s14 offen lds
    s_add_u32 s14, s14, 14336""")
a(f"""s_mul_i32 s14, s7, {4*14336}
s_add_u32 s14, s14, s13
s_add_u32 s14, s14, {12*14336}""")
for i in range(4):
    a(f"""buffer_load_dwordx4 {vr(64+4*i,4)}, v5, s[52:55], s14 offen
    s_add_u32 s14, s14, 14336""")
a("s_branch L_b1")
a.label("L_bulk67")
a("""s_add_u32 s10, s6, 1
s_and_b32 s10, s10, 7
s_lshl_b32 s11, s4, 3
s_add_u32 s11, s11, s10
s_mul_i32 s11, s11, 14336
s_lshl_b32 s12, s10, 11
s_bitcmp1_b32 s3, 0
s_cselect_b32 s13, 1024, 0
s_cselect_b64 vcc, -1, 0
s_add_u32 s12, s12, s13
v_cndmask_b32 v3, v3, v4, vcc""")
for j in range(7):
    a("""s_mov_b32 m0, s12
    s_add_u32 s12, s12, 16384
    buffer_load_dwordx4 v3, s[44:47], s11 offen lds
    s_add_u32 s11, s11, 128""")
a("s_branch L_b1")

a.label("L_repack")
a("""s_cmp_ge_u32 s2, 168
s_cbranch_scc1 L_norepack
s_mul_i32 s8, s2, 171
s_lshr_b32 s8, s8, 10
s_mul_i32 s9, s8, 6
s_sub_u32 s9, s2, s9
s_lshr_b32 s10, s9, 1
s_and_b32 s9, s9, 1""")
srd(52, 18, 1204224)
srd(56, 34, 896)
a(f"""v_lshrrev_b32 v5, 5, v1
v_mul_u32_u24 v6, 2688, v5
v_and_b32 v7, 31, v1
v_lshl_add_u32 v6, v7, 4, v6
s_mul_i32 s11, s8, {16*2688}
s_mul_i32 s12, s10, 896
s_add_u32 s11, s11, s12
s_mul_i32 s12, s9, 384
s_add_u32 s11, s11, s12
s_mov_b32 s12, {L_RP}""")
for n in range(8):
    a(f"""s_mov_b32 m0, s12
    s_add_u32 s12, s12, 1024
    buffer_load_dwordx4 v6, s[52:55], s11 offen lds
    s_add_u32 s11, s11, {2*2688}""")
a("""v_lshlrev_b32 v8, 4, v5
s_lshl_b32 s11, s8, 5
buffer_load_dwordx4 v[12:15], v8, s[56:59], s11 offen
s_barrier""")
a(f"""v_and_b32 v8, 15, v1
v_lshrrev_b32 v9, 2, v8
v_lshl_add_u32 v9, v5, 3, v9
v_lshlrev_b32 v9, 9, v9
v_and_b32 v10, 3, v1
v_lshl_add_u32 v9, v10, 3, v9
v_and_b32 v10, 16, v1
v_lshl_add_u32 v9, v10, 1, v9
s_lshl_b32 s11, s9, 6
s_add_u32 s11, s11, {L_RP}
v_add_u32 v9, s11, v9""")
mrow(10, 7, 11, 8)
a("""s_cmp_eq_u32 s10, 2
s_cselect_b64 vcc, -1, 0
v_cndmask_b32 v10, v7, v10, vcc
v_lshl_add_u32 v10, v5, 5, v10
v_lshlrev_b32 v10, 4, v10
s_cmp_eq_u32 s10, 0
s_cselect_b32 s66, 0x10000000, 0
s_mov_b32 s67, s66
s_mov_b32 s68, 0xf0000000
s_mov_b32 s69, 0xf0000000
s_lshl_b32 s11, s10, 4
s_lshl_b32 s12, s9, 3
s_add_u32 s11, s11, s12
s_mul_i32 s11, s11, 28
s_add_u32 s11, s11, s8
s_lshl_b32 s11, s11, 10""")
a(f"s_add_u32 s11, s11, {WR}\n s_waitcnt vmcnt(0)")
for e in range(8):
    a(f"ds_read_b64_tr_b16 {vr(16+4*e,2)}, v9 offset:{56*e}")
    a(f"ds_read_b64_tr_b16 {vr(18+4*e,2)}, v9 offset:{56*e+2048}")
    if e == 3: a("s_waitcnt lgkmcnt(4)")
for i in range(4): a(f"v_cndmask_b32 v{12+i}, 0, v{12+i}, s[66:67]")
a("s_waitcnt lgkmcnt(0)")
for e in range(8):
    for i in range(4): a(f"v_cndmask_b32 v{16+4*e+i}, v{16+4*e+i}, v{12+i}, s[68:69]")
    a(f"buffer_store_dwordx4 {vr(16+4*e,4)}, v10, s[48:51], s11 offen sc1\n s_add_u32 s11, s11, 28672")
wait_go()
a(f"s_lshl_b32 s11, s2, 7\n s_add_u32 s11, s11, {FRP}")
flag_store(11, V_ONE)
stamp(2)
a("s_branch L_b1")
a.label("L_norepack")
a("s_barrier\n s_branch L_b1")

a.label("L_mini")
a("""s_bitcmp1_b32 s5, 0
s_cselect_b32 s52, s30, s28
s_cselect_b32 s53, s31, s29
s_mov_b32 s54, 25088
s_mov_b32 s55, 0x00020000""")
a(f"s_mov_b32 s13, {L_WKV}\n s_mov_b32 s14, 0")
for g in range(7):
    a("s_mov_b32 m0, s13\n s_add_u32 s13, s13, 4096")
    for i in range(4 if g < 6 else 1):
        a(f"buffer_load_dwordx4 v{V_L16}, s[52:55], s14 offen offset:{1024*i} lds")
    a("s_add_u32 s14, s14, 4096")
x_pair_loads()
a("s_barrier")
a(f"""s_lshl_b32 s8, s5, 5
s_add_u32 s8, s8, s4
s_lshl_b32 s8, s8, 7
s_add_u32 s8, s8, {FL2}
s_lshl_b32 s9, s4, 6
s_add_u32 s9, s9, s5
s_lshl_b32 s9, s9, 7
s_add_u32 s9, s9, {FL4 - 2*2048}
v_lshlrev_b32 v5, 11, v1
v_add_u32 v6, s8, v5
v_add_u32 v5, s9, v5
v_add_u32 v7, {FL5 - FL4 - 4*2048}, v5
v_cmp_gt_u32 vcc, 2, v1
v_cndmask_b32 v5, v5, v6, vcc
v_cmp_lt_u32 vcc, 5, v1
v_cndmask_b32 v5, v5, v7, vcc
v_mov_b32 v6, 0
s_mov_b64 exec, 0x3ff
buffer_store_dword v6, v5, s[48:51], 0 offen sc1
s_mov_b64 exec, -1""")
a(f"""v_and_b32 v8, 15, v1
v_lshrrev_b32 v9, 4, v1
v_lshrrev_b32 v10, 1, v8
v_xor_b32 v10, v10, v9
s_lshl_b32 s8, s6, 11
v_lshl_add_u32 v11, v8, 7, s8
v_lshl_add_u32 v5, v10, 4, v11
v_xor_b32 v6, 64, v5
v_add_u32 v12, 65536, v5
v_add_u32 v13, 65536, v6
v_lshrrev_b32 v10, 2, v8
v_lshl_add_u32 v10, v9, 3, v10
v_mul_u32_u24 v10, 56, v10
v_and_b32 v11, 3, v1
v_lshl_add_u32 v7, v11, 3, v10
v_add_u32 v7, {L_WKV}, v7""")
for i in range(8): a(f"v_mov_b32 v{72+i}, 0")
a("s_waitcnt vmcnt(0)")
stamp(2)
XM, WM = 16, 112
def mini_reads(s):
    j, u = s >> 1, s & 1
    base = (5 + u) if j < 4 else (12 + u)
    a(f"ds_read_b128 {vr(XM+4*s,4)}, v{base} offset:{(j & 3)*16384}")
    for tl in range(2):
        a(f"ds_read_b64_tr_b16 {vr(WM+8*s+4*tl,2)}, v7 offset:{1792*s+32*tl}")
        a(f"ds_read_b64_tr_b16 {vr(WM+8*s+4*tl+2,2)}, v7 offset:{1792*s+32*tl+224}")
def mini_gemm(isv):
    mini_reads(0); mini_reads(1)
    for s in range(14):
        if s + 2 < 14: mini_reads(s + 2)
        a(f"s_waitcnt lgkmcnt({min(2, 13 - s) * 5})")
        for tl in range(2):
            A, B = vr(WM+8*s+4*tl, 4), vr(XM+4*s, 4)
            if isv: A, B = B, A
            a(f"{MF16} {vr(72+4*tl,4)}, {A}, {B}, {vr(72+4*tl,4)}")
a("""s_lshl_b32 s8, s4, 2
s_lshr_b32 s9, s6, 1
s_add_u32 s8, s8, s9
s_lshl_b32 s8, s8, 12""")
a(f"""s_add_u32 s8, s8, {KV}
s_and_b32 s9, s6, 1
s_bitcmp1_b32 s5, 0
s_cbranch_scc1 L_mini_v""")
mini_gemm(False)
a("""s_lshl_b32 s9, s9, 8
v_and_b32 v10, 1, v9
v_lshlrev_b32 v10, 9, v10
v_lshl_add_u32 v10, v8, 4, v10
v_lshrrev_b32 v11, 1, v9
v_lshl_add_u32 v10, v11, 3, v10
v_add_u32 v10, s9, v10
s_mov_b32 s66, 0
s_mov_b32 s67, 0xffff0000
v_cvt_pk_bf16_f32 v80, v72, v73
v_cvt_pk_bf16_f32 v81, v74, v75
v_cvt_pk_bf16_f32 v82, v76, v77
v_cvt_pk_bf16_f32 v83, v78, v79
buffer_store_dwordx2 v[80:81], v10, s[48:51], s8 offen sc1
v_cndmask_b32 v82, v82, 0, s[66:67]
v_cndmask_b32 v83, v83, 0, s[66:67]
v_mov_b32 v86, 0x3f803f80
v_mov_b32 v87, 0x00003f80
v_cndmask_b32 v84, v82, v86, s[66:67]
v_cndmask_b32 v85, v83, v87, s[66:67]
buffer_store_dwordx2 v[84:85], v10, s[48:51], s8 offen offset:1024 sc1
v_mov_b32 v88, 0
v_dot2_f32_bf16 v88, v80, v80, v88
v_dot2_f32_bf16 v88, v81, v81, v88
v_dot2_f32_bf16 v88, v82, v82, v88
v_dot2_f32_bf16 v88, v83, v83, v88
v_mov_b32 v89, v88
v_permlane16_swap_b32 v88, v89
v_add_f32 v88, v88, v89
v_mov_b32 v89, v88
v_permlane32_swap_b32 v88, v89
v_add_f32 v88, v88, v89
v_max_u32_dpp v88, v88, v88 row_ror:8 row_mask:0xf bank_mask:0xf
v_max_u32_dpp v88, v88, v88 row_ror:4 row_mask:0xf bank_mask:0xf
v_max_u32_dpp v88, v88, v88 row_ror:2 row_mask:0xf bank_mask:0xf
v_max_u32_dpp v88, v88, v88 row_ror:1 row_mask:0xf bank_mask:0xf
v_or_b32 v88, 1, v88
s_branch L_mini_pub""")
a.label("L_mini_v")
mini_gemm(True)
a("v_add_u32 v14, 16, v8")
mrow(10, 8, 11, 12)
mrow(13, 14, 11, 12)
a("""s_lshl_b32 s9, s9, 10
s_add_u32 s8, s8, s9
v_lshrrev_b32 v11, 1, v9
v_lshlrev_b32 v11, 9, v11
v_and_b32 v12, 1, v9
v_lshl_add_u32 v11, v12, 3, v11
v_lshl_add_u32 v10, v10, 4, v11
v_lshl_add_u32 v13, v13, 4, v11
s_mov_b32 s66, 0x30003000
s_mov_b32 s67, 0x30003000
s_mov_b32 s68, 0xc000c000
s_mov_b32 s69, 0xc000c000
v_mov_b32 v86, 0x3f803f80
v_cvt_pk_bf16_f32 v80, v72, v73
v_cvt_pk_bf16_f32 v81, v74, v75
v_cvt_pk_bf16_f32 v82, v76, v77
v_cvt_pk_bf16_f32 v83, v78, v79
buffer_store_dwordx2 v[80:81], v10, s[48:51], s8 offen offset:2048 sc1
v_cndmask_b32 v82, v82, v86, s[66:67]
v_cndmask_b32 v83, v83, v86, s[66:67]
v_cndmask_b32 v82, v82, 0, s[68:69]
v_cndmask_b32 v83, v83, 0, s[68:69]
buffer_store_dwordx2 v[82:83], v13, s[48:51], s8 offen offset:2048 sc1
v_mov_b32 v88, 1""")
a.label("L_mini_pub")
stamp(3)
wait_go()
a(f"""s_lshl_b32 s11, s4, 4
s_add_u32 s11, s11, s5
s_lshl_b32 s11, s11, 7""")
flag_store(11, 88)
stamp(4)

a.label("L_b1")
XF = 112
a("""v_and_b32 v8, 31, v1
v_lshrrev_b32 v9, 5, v1
v_lshrrev_b32 v10, 1, v8
v_and_b32 v10, 7, v10
v_xor_b32 v10, v10, v9
s_lshl_b32 s8, s7, 12
v_lshl_add_u32 v11, v8, 7, s8
v_lshl_add_u32 v4, v10, 4, v11
v_xor_b32 v5, 32, v4
v_xor_b32 v6, 64, v4
v_xor_b32 v7, 96, v4
s_waitcnt vmcnt(0)
s_barrier""")
stamp(5)
a("""s_cmp_ge_u32 s3, 4
s_cbranch_scc1 L_nowqb""")
a(f"""s_lshl_b32 s8, s7, 12
s_add_u32 s8, s8, {L_WQ + 12*1024}
v_add_u32 v10, s8, v{V_L16}""")
for i in range(4): a(f"ds_write_b128 v10, {vr(64+4*i,4)} offset:{1024*i}")
a.label("L_nowqb")
for s in range(28):
    j, u = s >> 2, s & 3
    if s == 16:
        for i in range(4): a(f"v_add_u32 v{4+i}, 65536, v{4+i}")
    a(f"ds_read_b128 {vr(XF+4*s,4)}, v{4+u} offset:{(j & 3)*16384}")
    if s % 8 == 7: a("s_waitcnt lgkmcnt(4)")
a("""v_and_b32 v2, 15, v1
v_lshrrev_b32 v2, 2, v2
v_and_b32 v3, 3, v1
v_lshlrev_b32 v3, 3, v3
v_and_b32 v10, 16, v1
v_lshl_add_u32 v3, v10, 1, v3
s_waitcnt lgkmcnt(0)
s_barrier""")
a("""s_cmp_ge_u32 s3, 4
s_cbranch_scc1 L_helper""")

Q, O, S, KVR = 16, 48, 112, 176
WF = 224
a(f"""v_lshl_add_u32 v10, v9, 3, v2
v_lshlrev_b32 v10, 6, v10
v_cmp_eq_u32 vcc, 48, v3
v_cndmask_b32 v11, v3, 56, vcc
v_add_u32 v10, v10, v11
v_add_u32 v10, {L_WQ}, v10""")
def wq_read(s):
    b = WF + 4*(s & 3)
    a(f"ds_read_b64_tr_b16 {vr(b,2)}, v10 offset:{1024*s}")
    a(f"ds_read_b64_tr_b16 {vr(b+2,2)}, v10 offset:{1024*s+256}")
for s in range(3): wq_read(s)
for s in range(28):
    if s + 3 < 28: wq_read(s + 3)
    a(f"s_waitcnt lgkmcnt({2*min(3, 27 - s)})")
    a(f"{MF32} {vr(O,16)}, {vr(WF+4*(s&3),4)}, {vr(XF+4*s,4)}, {'0' if s == 0 else vr(O,16)}")
a(f"s_mov_b32 s72, {f2u(CQ):#x}\n s_mov_b32 s73, s72")
a(f"""s_lshl_b32 s8, s7, 11
s_add_u32 s8, s8, {L_QF}
v_add_u32 v10, s8, v{V_L16}
s_lshl_b32 s8, s7, 7
s_add_u32 s8, s8, {L_MISC + M_NQ}
v_lshl_add_u32 v11, v8, 2, s8""")
for i in range(8): a(f"v_pk_mul_f32 {vr(O+2*i,2)}, {vr(O+2*i,2)}, s[72:73]")
for i in range(8): a(f"v_cvt_pk_bf16_f32 v{Q+i}, v{O+2*i}, v{O+2*i+1}")
a(f"""v_cndmask_b32 v{Q+6}, v{Q+6}, 0, s[64:65]
v_cndmask_b32 v{Q+7}, v{Q+7}, 0, s[64:65]
v_mov_b32 v12, 0
ds_write_b128 v10, {vr(Q,4)}
ds_write_b128 v10, {vr(Q+4,4)} offset:1024""")
for i in range(8): a(f"v_dot2_f32_bf16 v12, v{Q+i}, v{Q+i}, v12")
a("""v_mov_b32 v13, v12
v_permlane32_swap_b32 v12, v13
v_add_f32 v12, v12, v13
v_sqrt_f32 v12, v12
s_nop 0
ds_write_b32 v11, v12
s_waitcnt lgkmcnt(0)
s_barrier""")
stamp(6)
for i in range(1, 4):
    a(f"""s_add_u32 s8, s7, {i}
    s_and_b32 s8, s8, 3
    s_lshl_b32 s9, s8, 11
    s_add_u32 s9, s9, {L_QF}
    v_add_u32 v10, s9, v{V_L16}
    s_lshl_b32 s9, s8, 7
    s_add_u32 s9, s9, {L_MISC + M_NQ}
    v_lshl_add_u32 v11, v8, 2, s9
    ds_read_b128 {vr(Q+8*i,4)}, v10
    ds_read_b128 {vr(Q+8*i+4,4)}, v10 offset:1024
    ds_read_b32 v{12+i}, v11""")
a(f"""v_lshlrev_b32 v10, 7, v1
s_lshl_b32 s8, s7, 13""")
poll(10, "s8", 11)
stamp(7)
a(f"""s_lshl_b32 s8, s7, 16
s_add_u32 s8, s8, {KV}
s_add_u32 s52, s40, s8
s_addc_u32 s53, s41, 0
s_mov_b32 s54, 65536
s_mov_b32 s55, 0x00020000
s_mov_b32 s74, 0""")
def kload(kt, soff, imm):
    b = KVR + 16*(kt & 3)
    a(f"buffer_load_dwordx4 {vr(b,4)}, v{V_L16}, s[52:55], {soff} offen offset:{imm} sc1")
    a(f"buffer_load_dwordx4 {vr(b+4,4)}, v{V_L16}, s[52:55], {soff} offen offset:{imm+1024} sc1")
def vload(kt, soff, imm):
    b = KVR + 16*(kt & 3) + 8
    a(f"buffer_load_dwordx4 {vr(b,4)}, v{V_L16}, s[52:55], {soff} offen offset:{imm} sc1")
    a(f"buffer_load_dwordx4 {vr(b+4,4)}, v{V_L16}, s[52:55], {soff} offen offset:{imm+1024} sc1")
for kt in range(4):
    kload(kt, "s74", 0)
    if kt < 3:
        vload(kt, "s74", 2048)
        a("s_add_u32 s74, s74, 4096")
a(f"ds_max_u32 v{V_MISC}, v11 offset:{C_KM+4}")
lds_signal(C_KM)
for i in range(64): a(f"v_mov_b32 v{O+i}, 0")
for i in range(16): a(f"v_mov_b32 v{S+48+i}, 0")
for i in range(8): a(f"v_mov_b32 v{KVR+56+i}, 0")
lds_wait(C_KM, 4, 244, wide=True)
a(f"""v_sqrt_f32 v245, v245
v_mov_b32 v246, 0x42000000
v_mul_f32 v245, {f2u(-(1.0 + 2.0**-6)):#x}, v245""")
for i in range(4):
    a(f"""v_fma_f32 v{12+i}, v{12+i}, v245, v246
    v_cvt_pk_bf16_f32 v{12+i}, v{12+i}, 0
    v_cndmask_b32 v{Q+8*i+6}, v{Q+8*i+6}, v{12+i}, s[64:65]""")
a("s_waitcnt vmcnt(10)")
stamp(8)
def QK(kt, q, part):
    kb = KVR + 16*(kt & 3) + 4*part
    sb = S + 16*q
    a(f"{MF32} {vr(sb,16)}, {vr(kb,4)}, {vr(Q+8*q+4*part,4)}, {'0' if part == 0 else vr(sb,16)}")
def PV(kt, q, part):
    vb = KVR + 16*(kt & 3) + 8 + 4*part
    a(f"{SMF} {vr(O+16*q,16)}, {vr(vb,4)}, {vr(S+16*q+8*part,8)}, v{V_IDX}")
def EX(q, g):
    for i in range(4): a(f"v_exp_f32 v{S+16*q+4*g+i}, v{S+16*q+4*g+i}")
QK(0, 0, 0); QK(0, 0, 1)
a("s_mov_b32 s75, 0\n s_nop 7\n s_nop 1")
a(".p2align 3")
a.label("L_attn")
for kt in range(4):
    for q in range(4):
        nk, nq = (kt, q + 1) if q < 3 else (kt + 1, 0)
        pk, pq = (kt, q - 1) if q > 0 else (kt - 1, 3)
        if q == 3: a("s_waitcnt vmcnt(10)\n s_addk_i32 s74, 4096")
        QK(nk, nq, 0); EX(q, 0)
        QK(nk, nq, 1); EX(q, 1)
        if q == 2: kload(kt, "s76", 0)
        PV(pk, pq, 0); EX(q, 2)
        PV(pk, pq, 1); EX(q, 3)
        if q == 0:
            vload(kt - 1, "s74", 2048)
            a("s_add_u32 s76, s74, 4096")
a("""s_add_u32 s75, s75, 1
s_cmp_lt_u32 s75, 4
s_cbranch_scc1 L_attn""")
PV(3, 3, 0); PV(3, 3, 1)
stamp(9)
a("s_barrier")
for i in range(1, 4):
    a(f"""s_add_u32 s8, s7, {i}
    s_and_b32 s8, s8, 3
    s_mul_i32 s8, s8, 12288
    s_add_u32 s8, s8, {L_OX + (i-1)*4096}
    v_add_u32 v10, s8, v{V_L16}""")
    for qd in range(4): a(f"ds_write_b128 v10, {vr(O+16*i+4*qd,4)} offset:{1024*qd}")
a(f"""s_mul_i32 s8, s7, 12288
s_add_u32 s8, s8, {L_OX}
v_add_u32 v10, s8, v{V_L16}
s_lshl_b32 s8, s7, 7
s_add_u32 s8, s8, {L_MISC + M_G}
v_lshl_add_u32 v11, v8, 2, s8
s_waitcnt lgkmcnt(0)
s_barrier""")
a("ds_read_b32 v12, v11")
for i in range(12): a(f"ds_read_b128 {vr(S+4*i,4)}, v10 offset:{1024*i}")
a(f"""s_lshl_b32 s8, s4, 2
s_add_u32 s8, s8, s7
s_lshl_b32 s8, s8, 4
s_add_u32 s8, s8, s5
s_lshl_b32 s9, s8, 11
s_add_u32 s9, s9, {OB}
s_lshl_b32 s11, s8, 7
s_add_u32 s11, s11, {FL5}""")
for i in range(3):
    a(f"s_waitcnt lgkmcnt({8 - 4*i})")
    for k in range(8): a(f"v_pk_add_f32 {vr(O+2*k,2)}, {vr(O+2*k,2)}, {vr(S+16*i+2*k,2)}")
a(f"""v_rcp_f32 v14, v{O+7}
s_nop 0
v_mul_f32 v14, v14, v12""")
for k in range(8): a(f"v_pk_mul_f32 {vr(O+2*k,2)}, {vr(O+2*k,2)}, v[14:15] op_sel_hi:[1,0]")
a(f"v_mov_b32 v{O+7}, 0\n v_mov_b32 v{O+15}, 0")
for k in range(8): a(f"v_cvt_pk_bf16_f32 v{Q+k}, v{O+2*k}, v{O+2*k+1}")
a(f"""buffer_store_dwordx4 {vr(Q,4)}, v{V_L16}, s[48:51], s9 offen sc1
buffer_store_dwordx4 {vr(Q+4,4)}, v{V_L16}, s[48:51], s9 offen offset:1024 sc1
s_waitcnt vmcnt(0)""")
flag_store(11, V_ONE)
stamp(10)
a("s_branch L_final")

a.label("L_helper")
a("s_setprio 1")
srd(52, 20, 25088)
a(f"""s_mul_i32 s8, s5, 1568
s_and_b32 s9, s7, 1
s_lshl_b32 s9, s9, 10
s_add_u32 s8, s8, s9
s_add_u32 s9, s9, {L_WPHI}
s_mov_b32 m0, s9
s_nop 0
buffer_load_dwordx4 v{V_L16}, s[52:55], s8 offen lds
s_waitcnt vmcnt(0)
s_barrier""")
WP = 80
a(f"""v_lshl_add_u32 v10, v9, 2, v2
v_mul_u32_u24 v10, 56, v10
v_min_u32 v11, 48, v3
v_add_u32 v10, v10, v11
v_add_u32 v10, {L_WPHI}, v10
v_mul_u32_u24 v12, 56, v2
v_add_u32 v12, v12, v11
v_add_u32 v12, {L_WPHI}, v12
ds_read_b64_tr_b16 {vr(WP,2)}, v10
ds_read_b64_tr_b16 {vr(WP+2,2)}, v10 offset:{8*56}
ds_read_b64_tr_b16 {vr(WP+4,2)}, v10 offset:{16*56}
ds_read_b64_tr_b16 {vr(WP+6,2)}, v12 offset:{24*56}""")
a(f"""v_lshrrev_b32 v10, 2, v1
v_mul_u32_u24 v10, 6, v10
v_and_b32 v11, 3, v1
v_lshl_add_u32 v10, v11, 1, v10
v_lshlrev_b32 v10, 7, v10
s_mul_i32 s8, s7, 42
s_lshr_b32 s9, s5, 3
s_add_u32 s8, s8, s9
s_lshl_b32 s8, s8, 7
s_add_u32 s8, s8, {FRP}""")
poll(10, "s8", 11, mask="0x07777777")
stamp(6)
for slot, mtx in enumerate((1, 2, 0)):
    a(f"""s_add_u32 s8, s5, {16*mtx}
    s_mul_i32 s8, s8, 28672
    s_mul_i32 s9, s7, 7168
    s_add_u32 s8, s8, s9
    s_add_u32 s8, s8, {WR}
    s_add_u32 s9, s9, {L_WA + slot*28672}
    s_mov_b32 m0, s9""")
    for i in range(4): a(f"buffer_load_dwordx4 v{V_L16}, s[48:51], s8 offen offset:{1024*i} sc1 lds")
    a("s_add_u32 s8, s8, 4096\n s_add_u32 s9, s9, 4096\n s_mov_b32 m0, s9")
    for i in range(3): a(f"buffer_load_dwordx4 v{V_L16}, s[48:51], s8 offen offset:{1024*i} sc1 lds")
a("s_waitcnt vmcnt(7)")
lds_signal(C_WA)
a(f"""s_mov_b32 s72, {f2u(LOG2E):#x}
s_mov_b32 s73, s72
s_mov_b32 s74, {f2u(-LOG2E):#x}
s_mov_b32 s75, s74""")
lds_wait(C_WA, 4)
AK, AV = 48, 64
def wa_read(s, slot, dst): a(f"ds_read_b128 {vr(dst,4)}, v{V_L16} offset:{L_WA + slot*28672 + 1024*s}")
def kv_reads(s):
    wa_read(s, 0, 16 + 8*(s & 3)); wa_read(s, 1, 16 + 8*(s & 3) + 4)
for s in range(3): kv_reads(s)
for s in range(28):
    if s + 3 < 28: kv_reads(s + 3)
    a(f"s_waitcnt lgkmcnt({2*min(3, 27 - s)})")
    b = 16 + 8*(s & 3)
    a(f"{MF32} {vr(AK,16)}, {vr(b,4)}, {vr(XF+4*s,4)}, {'0' if s == 0 else vr(AK,16)}")
    a(f"{MF32} {vr(AV,16)}, {vr(XF+4*s,4)}, {vr(b+4,4)}, {'0' if s == 0 else vr(AV,16)}")
a("s_waitcnt vmcnt(0)")
lds_signal(C_WAQ)
EP, EN, PB, PD = 16, 32, 88, 96
def featmap(acc):
    for i in range(8): a(f"v_cvt_pk_bf16_f32 v{PB+i}, v{acc+2*i}, v{acc+2*i+1}")
    a(f"{MF32} {vr(PD,16)}, {vr(WP,4)}, {vr(PB,4)}, 0")
    a(f"{MF32} {vr(PD,16)}, {vr(WP+4,4)}, {vr(PB+4,4)}, {vr(PD,16)}")
def featmap2():
    a(f"v_max3_f32 v10, v{PD}, v{PD+1}, v{PD+2}\n v_min3_f32 v12, v{PD}, v{PD+1}, v{PD+2}")
    for i in range(3, 15, 2):
        a(f"v_max3_f32 v10, v10, v{PD+i}, v{PD+i+1}\n v_min3_f32 v12, v12, v{PD+i}, v{PD+i+1}")
    a(f"""v_max_f32 v10, v10, v{PD+15}
    v_min_f32 v12, v12, v{PD+15}
    v_mov_b32 v11, v10
    v_mov_b32 v13, v12
    v_permlane32_swap_b32 v10, v11
    v_permlane32_swap_b32 v12, v13
    v_max_f32 v10, v10, v11
    v_min_f32 v12, v12, v13
    v_mul_f32 v10, s74, v10
    v_mul_f32 v12, s72, v12""")
    for i in range(8): a(f"v_pk_fma_f32 {vr(EP+2*i,2)}, {vr(PD+2*i,2)}, s[72:73], v[10:11] op_sel_hi:[1,1,0]")
    for i in range(8): a(f"v_pk_fma_f32 {vr(EN+2*i,2)}, {vr(PD+2*i,2)}, s[74:75], v[12:13] op_sel_hi:[1,1,0]")
    for i in range(32): a(f"v_exp_f32 v{EP+i}, v{EP+i}")
featmap(AK)
a(f"""s_mov_b32 s66, 0x8800
s_mov_b32 s67, 0x8800
v_mov_b32 v14, 0x3f803f80
s_lshl_b32 s8, s7, 11
s_add_u32 s8, s8, {L_VX}
v_add_u32 v15, s8, v{V_L16}""")
for i in range(8): a(f"v_cvt_pk_bf16_f32 v{AV+i}, v{AV+2*i}, v{AV+2*i+1}")
for i in range(8): a(f"v_cndmask_b32 v{AV+i}, v{AV+i}, v14, s[66:67]")
a(f"ds_write_b128 v15, {vr(AV,4)}\n ds_write_b128 v15, {vr(AV+4,4)} offset:1024")
featmap2()
for E in (EP, EN):
    for i in range(12, 16): a(f"v_cndmask_b32 v{E+i}, v{E+i}, 0, s[64:65]")
for E, T in ((EP, PD), (EN, PD + 8)):
    for i in range(4): a(f"v_pk_add_f32 {vr(T+2*i,2)}, {vr(E+4*i,2)}, {vr(E+4*i+2,2)}")
for T in (PD, PD + 8):
    a(f"v_pk_add_f32 {vr(T,2)}, {vr(T,2)}, {vr(T+2,2)}\n v_pk_add_f32 {vr(T+4,2)}, {vr(T+4,2)}, {vr(T+6,2)}")
for T in (PD, PD + 8): a(f"v_pk_add_f32 {vr(T,2)}, {vr(T,2)}, {vr(T+4,2)}")
a(f"""v_add_f32 v10, v{PD}, v{PD+1}
v_add_f32 v12, v{PD+8}, v{PD+9}
v_mov_b32 v11, v10
v_mov_b32 v13, v12
v_permlane32_swap_b32 v10, v11
v_permlane32_swap_b32 v12, v13
v_add_f32 v10, v10, v11
v_add_f32 v12, v12, v13
v_rcp_f32 v10, v10
v_rcp_f32 v12, v12
s_mul_i32 s8, s7, {32*72}
s_add_u32 s8, s8, {L_PHI}
v_mul_u32_u24 v15, 72, v8
v_lshl_add_u32 v15, v9, 3, v15
v_add_u32 v15, s8, v15""")
for i in range(8): a(f"v_pk_mul_f32 {vr(EP+2*i,2)}, {vr(EP+2*i,2)}, v[10:11] op_sel_hi:[1,0]")
for i in range(8): a(f"v_pk_mul_f32 {vr(EN+2*i,2)}, {vr(EN+2*i,2)}, v[12:13] op_sel_hi:[1,0]")
for i in range(16): a(f"v_cvt_pk_bf16_f32 v{PD+i}, v{EP+2*i}, v{EP+2*i+1}")
for sg_ in range(2):
    for qd in range(4): a(f"ds_write_b64 v15, {vr(PD+8*sg_+2*qd,2)} offset:{sg_*9216 + 16*qd}")
lds_signal(C_S2)
lds_wait(C_S2, 4)
stamp(7)
a("""s_and_b32 s77, s5, 1
s_lshr_b32 s78, s5, 1
v_lshrrev_b32 v10, 3, v1
v_mul_u32_u24 v10, 896, v10
v_and_b32 v11, 7, v1
v_lshl_add_u32 v247, v11, 4, v10""")
def wo_dma(ptr, lbase):
    srd(52, ptr, 401408)
    L = lab("wo")
    a(f"""s_mul_i32 s8, s7, {112*896}
    s_lshl_b32 s9, s78, 7
    s_add_u32 s8, s8, s9
    s_mul_i32 s9, s7, 14336
    s_add_u32 s9, s9, {lbase}
    s_mov_b32 s10, 0""")
    a.label(L)
    a(f"""s_mov_b32 m0, s9
    s_add_u32 s9, s9, 1024
    buffer_load_dwordx4 v247, s[52:55], s8 offen lds
    s_add_u32 s8, s8, 7168
    s_add_u32 s10, s10, 1
    s_cmp_lt_u32 s10, 14
    s_cbranch_scc1 {L}""")
a("""s_cmp_ge_u32 s7, 2
s_cbranch_scc1 L_nokvp""")
a(f"""v_lshl_add_u32 v10, v9, 2, v2
v_mul_u32_u24 v10, 72, v10
v_add_u32 v10, v10, v3
s_mul_i32 s8, s7, 9216
s_add_u32 s8, s8, {L_PHI}
v_add_u32 v10, s8, v10
v_add_u32 v11, {L_VX}, v{V_L16}""")
def kvp_reads(n):
    b = WF + 8*(n & 1)
    a(f"ds_read_b64_tr_b16 {vr(b,2)}, v10 offset:{16*n*72}")
    a(f"ds_read_b64_tr_b16 {vr(b+2,2)}, v10 offset:{(16*n+8)*72}")
    a(f"ds_read_b128 {vr(b+4,4)}, v11 offset:{1024*n}")
kvp_reads(0)
for n in range(8):
    if n + 1 < 8: kvp_reads(n + 1)
    a(f"s_waitcnt lgkmcnt({3 if n + 1 < 8 else 0})")
    b = WF + 8*(n & 1)
    a(f"{MF32} {vr(AK,16)}, {vr(b,4)}, {vr(b+4,4)}, {'0' if n == 0 else vr(AK,16)}")
a(f"""s_lshl_b32 s8, s5, 1
s_add_u32 s8, s8, s7
s_lshl_b32 s11, s8, 4
s_add_u32 s11, s11, s4
s_lshl_b32 s11, s11, 7
s_add_u32 s11, s11, {FL2}
s_lshl_b32 s8, s8, 5
s_add_u32 s8, s8, s4
s_lshl_b32 s8, s8, 10
s_add_u32 s8, s8, {KVP}
s_add_u32 s9, s8, 16384""")
for i in range(8): a(f"v_cvt_pk_bf16_f32 v{PB+i}, v{AK+2*i}, v{AK+2*i+1}")
a(f"""buffer_store_dwordx4 {vr(PB,4)}, v{V_L16}, s[48:51], s8 offen sc1
buffer_store_dwordx4 {vr(PB+4,4)}, v{V_L16}, s[48:51], s9 offen sc1
s_waitcnt vmcnt(0)""")
flag_store(11, V_ONE)
a.label("L_nokvp")
a("s_cmp_ge_u32 s5, 14\n s_cbranch_scc1 L_nowoa")
wo_dma(22, L_WOA)
a.label("L_nowoa")
lds_wait(C_WAQ, 4)
def qa_read(s): wa_read(s, 2, WF + 4*(s & 3))
a(f"v_add_u32 v10, {L_WA + 2*28672}, v{V_L16}")
def qa_read(s): a(f"ds_read_b128 {vr(WF+4*(s&3),4)}, v10 offset:{1024*s}")
for s in range(3): qa_read(s)
for s in range(28):
    if s + 3 < 28: qa_read(s + 3)
    a(f"s_waitcnt lgkmcnt({min(3, 27 - s)})")
    a(f"{MF32} {vr(AK,16)}, {vr(WF+4*(s&3),4)}, {vr(XF+4*s,4)}, {'0' if s == 0 else vr(AK,16)}")
a(f"""v_mov_b32 v14, v{AK+12}
v_mov_b32 v15, v{AK+12}
v_cndmask_b32 v{AK+12}, v{AK+12}, 0, s[64:65]""")
featmap(AK)
a(f"""v_permlane32_swap_b32 v14, v15
v_mul_f32 v15, s74, v15
v_exp_f32 v14, v15
s_lshl_b32 s8, s7, 7
s_add_u32 s8, s8, {L_MISC + M_G}
v_add_f32 v14, 1.0, v14
v_rcp_f32 v14, v14
v_lshl_add_u32 v11, v8, 2, s8
v_sub_f32 v15, 1.0, v14
ds_write_b32 v11, v15""")
featmap2()
stamp(8)
lds_wait(C_KM, 4)
a(f"""v_lshlrev_b32 v10, 7, v1
s_lshl_b32 s8, s5, 1
s_lshr_b32 s9, s7, 1
s_add_u32 s8, s8, s9
s_lshl_b32 s8, s8, 11
s_add_u32 s8, s8, {FL2}""")
a("""v_lshrrev_b32 v11, 3, v8
v_cmp_eq_u32 vcc, v11, v9
v_and_b32 v12, 1, v1
v_lshlrev_b32 v12, 4, v12
v_mov_b32 v13, 0x3f80
v_lshlrev_b32 v12, v12, v13
v_cndmask_b32 v12, 0, v12, vcc
v_bfe_u32 v11, v1, 1, 2""")
for i in range(4):
    a(f"v_cmp_eq_u32 vcc, {i}, v11\n v_cndmask_b32 v{PB+i}, 0, v12, vcc")
poll(10, "s8", 11, mask="0xffff")
stamp(9)
a(f"""s_lshl_b32 s8, s5, 2
s_add_u32 s8, s8, s7
s_lshl_b32 s8, s8, 14
s_add_u32 s8, s8, {KVP}""")
LB = 176
for g in range(4):
    for i in range(4): a(f"buffer_load_dwordx4 {vr(LB+16*g+4*i,4)}, v{V_L16}, s[48:51], s8 offen offset:{1024*i} sc1")
    a("s_add_u32 s8, s8, 4096")
a("""s_mov_b32 s66, 0x88000000
s_mov_b32 s67, 0x88000000
s_bitcmp1_b32 s7, 0
s_cselect_b32 s69, 0x88000000, 0
s_mov_b32 s68, 0
v_mov_b32 v13, 0x3f803f80""")
for n in range(16):
    a(f"s_waitcnt vmcnt({15-n})")
    a(f"{MF32} {vr(AK,16)}, {vr(PB,4)}, {vr(LB+4*n,4)}, {'0' if n == 0 else vr(AK,16)}")
a(f"""s_lshl_b32 s8, s7, 10
s_add_u32 s8, s8, {L_KVF}
v_add_u32 v10, s8, v{V_L16}
v_add_u32 v11, {L_KVF}, v{V_L16}""")
for i in range(4): a(f"v_cvt_pk_bf16_f32 v{PB+4+i}, v{AK+2*i}, v{AK+2*i+1}")
for i in range(4): a(f"v_cndmask_b32 v{PB+4+i}, v{PB+4+i}, v13, s[66:67]")
for i in range(2, 4): a(f"v_cndmask_b32 v{PB+4+i}, v{PB+4+i}, 0, s[68:69]")
a(f"ds_write_b128 v10, {vr(PB+4,4)}")
lds_signal(C_S3)
for i in range(32): a(f"v_mov_b32 v{AK+i}, 0")
lds_wait(C_S3, 4)
for i in range(4): a(f"ds_read_b128 {vr(PD+4*i,4)}, v11 offset:{1024*i}")
a("s_waitcnt lgkmcnt(0)")
for sg_, E in enumerate((EP, EN)):
    for fr in range(2):
        a(f"{SMF} {vr(AK+16*sg_,16)}, {vr(PD+8*sg_+4*fr,4)}, {vr(E+8*fr,8)}, v{V_IDX}")
a(f"""s_lshl_b32 s8, s4, 2
s_add_u32 s8, s8, s7
s_lshl_b32 s8, s8, 4
s_add_u32 s8, s8, s5
s_lshl_b32 s9, s8, 11
s_add_u32 s9, s9, {OA}
s_lshl_b32 s11, s8, 7
s_add_u32 s11, s11, {FL4}
v_rcp_f32 v10, v{AK+15}
v_rcp_f32 v12, v{AV+15}
v_mov_b32 v13, {f2u(1e-6):#x}
v_fma_f32 v13, v{AK+7}, v10, v13
v_fma_f32 v13, v{AV+7}, v12, v13
v_rcp_f32 v13, v13
s_nop 0
v_mul_f32 v13, v13, v14
v_mul_f32 v10, v10, v13
v_mul_f32 v12, v12, v13""")
for i in range(8): a(f"v_pk_mul_f32 {vr(AK+2*i,2)}, {vr(AK+2*i,2)}, v[10:11] op_sel_hi:[1,0]")
for i in range(8): a(f"v_pk_fma_f32 {vr(AK+2*i,2)}, {vr(AV+2*i,2)}, v[12:13], {vr(AK+2*i,2)} op_sel_hi:[1,0,1]")
a(f"v_mov_b32 v{AK+7}, 0\n v_mov_b32 v{AK+15}, 0")
for i in range(8): a(f"v_cvt_pk_bf16_f32 v{PB+i}, v{AK+2*i}, v{AK+2*i+1}")
a(f"""buffer_store_dwordx4 {vr(PB,4)}, v{V_L16}, s[48:51], s9 offen sc1
buffer_store_dwordx4 {vr(PB+4,4)}, v{V_L16}, s[48:51], s9 offen offset:1024 sc1
s_waitcnt vmcnt(0)""")
flag_store(11, V_ONE)
stamp(10)
a("s_cmp_ge_u32 s5, 14\n s_cbranch_scc1 L_idle")
wo_dma(32, L_WOB)
ACC, WB = 48, 112
a(f"""v_mul_u32_u24 v10, 7, v9
v_add_u32 v11, v10, v2
v_lshl_add_u32 v4, v11, 7, v3
v_min_u32 v11, 2, v2
v_add_u32 v11, v11, v10
v_add_u32 v11, 4, v11
v_lshl_add_u32 v5, v11, 7, v3
s_mul_i32 s8, s7, 14336
v_add_u32 v4, s8, v4
v_add_u32 v5, s8, v5
v_lshrrev_b32 v10, 2, v1
v_lshlrev_b32 v10, 4, v10
v_and_b32 v11, 3, v1
v_add_u32 v10, v10, v11
v_lshlrev_b32 v6, 7, v10
s_lshl_b32 s79, s4, 2
s_lshl_b32 s9, s77, 1
s_add_u32 s79, s79, s9
s_lshl_b32 s79, s79, 4
s_lshl_b32 s9, s7, 2
s_add_u32 s79, s79, s9""")
def wo_frags():
    n = 0
    for ks in range(8):
        for ct in range(2):
            off = (28*(ks >> 1) + 14*(ks & 1))*128 + 64*ct
            b = WB + 8*ks + 4*ct
            a(f"ds_read_b64_tr_b16 {vr(b,2)}, v4 offset:{off}")
            a(f"ds_read_b64_tr_b16 {vr(b+2,2)}, v5 offset:{off}")
            n += 2
            if n % 8 == 0: a("s_waitcnt lgkmcnt(4)")
    a("s_waitcnt lgkmcnt(0)")
def o_gemm(flags, obase, first):
    a(f"s_lshl_b32 s8, s79, 7\n s_add_u32 s8, s8, {flags}")
    poll(6, "s8", 11, mask="0xff")
    if not first: stamp(12)
    a(f"s_lshl_b32 s8, s79, 11\n s_add_u32 s8, s8, {obase}\n s_add_u32 s9, s8, 32768")
    for ks in range(8):
        if ks == 4: a("s_add_u32 s8, s8, 4096\n s_add_u32 s9, s9, 4096")
        for tt in range(2):
            a(f"buffer_load_dwordx4 {vr(LB+8*ks+4*tt,4)}, v{V_L16}, s[48:51], s{8+tt} offen offset:{1024*(ks&3)} sc1")
    for ks in range(8):
        for tt in range(2):
            a(f"s_waitcnt vmcnt({15 - 2*ks - tt})")
            for ct in range(2):
                d = vr(ACC + 32*tt + 16*ct, 16)
                a(f"{MF32} {d}, {vr(WB+8*ks+4*ct,4)}, {vr(LB+8*ks+4*tt,4)}, {'0' if (first and ks == 0) else d}")
wo_frags()
o_gemm(FL4, OA, True)
a(f"v_add_u32 v4, {L_WOB}, v4\n v_add_u32 v5, {L_WOB}, v5")
wo_frags()
stamp(11)
a("s_barrier\n s_barrier")
o_gemm(FL5, OB, False)
stamp(13)
a(f"""s_mul_i32 s8, s7, 17408
s_add_u32 s8, s8, {L_FR}
v_mul_u32_u24 v10, 272, v8
v_lshl_add_u32 v10, v9, 4, v10
v_add_u32 v10, s8, v10""")
for tt in range(2):
    for ct in range(2):
        for qd in range(4):
            a(f"ds_write_b128 v10, {vr(ACC+32*tt+16*ct+4*qd,4)} offset:{tt*32*272 + ct*128 + qd*32}")
a("s_waitcnt lgkmcnt(0)\n s_branch L_final")
a.label("L_idle")
a("s_barrier\n s_barrier")

a.label("L_final")
a("s_cmp_ge_u32 s5, 14\n s_cbranch_scc1 L_done")
srd(52, 36, 1835008)
a(f"""v_lshrrev_b32 v10, 3, v0
v_and_b32 v11, 7, v0
v_mul_u32_u24 v12, 272, v10
v_lshl_add_u32 v12, v11, 5, v12
v_add_u32 v12, {L_FR}, v12
v_mul_u32_u24 v13, 896, v10
v_lshl_add_u32 v13, v11, 4, v13
s_and_b32 s8, s5, 1
s_lshl_b32 s9, s4, 1
s_add_u32 s8, s8, s9
s_mul_i32 s8, s8, {64*896}
s_lshr_b32 s9, s5, 1
s_lshl_b32 s9, s9, 7
s_add_u32 s8, s8, s9
s_barrier""")
for wv in range(4):
    a(f"ds_read_b128 {vr(16+8*wv,4)}, v12 offset:{17408*wv}")
    a(f"ds_read_b128 {vr(20+8*wv,4)}, v12 offset:{17408*wv+16}")
for wv in range(1, 4):
    a(f"s_waitcnt lgkmcnt({6 - 2*wv})")
    for k in range(4): a(f"v_pk_add_f32 {vr(16+2*k,2)}, {vr(16+2*k,2)}, {vr(16+8*wv+2*k,2)}")
for k in range(4): a(f"v_cvt_pk_bf16_f32 v{24+k}, v{16+2*k}, v{17+2*k}")
a("buffer_store_dwordx4 v[24:27], v13, s[52:55], s8 offen")
a.label("L_done")
if STAMP:
    a("s_waitcnt vmcnt(0)")
    stamp(15)
    for i in range(16): a(f"v_mov_b32 v{16+i}, s{80+i}")
    a(f"""s_lshl_b32 s8, s2, 3
    s_add_u32 s8, s8, s3
    s_lshl_b32 s8, s8, 6
    s_add_u32 s8, s8, {STP}
    v_mov_b32 v10, 0
    s_mov_b64 exec, 1
    buffer_store_dwordx4 v[16:19], v10, s[48:51], s8 offen
    buffer_store_dwordx4 v[20:23], v10, s[48:51], s8 offen offset:16
    buffer_store_dwordx4 v[24:27], v10, s[48:51], s8 offen offset:32
    buffer_store_dwordx4 v[28:31], v10, s[48:51], s8 offen offset:48""")
a.label("L_end")
a("s_endpgm")

problems = a.fix()
for p in problems: print("HAZARD:", p, file=sys.stderr)

ref = open(f"cdna_kernels/{NAME}.s.ref").read() if False else None
head = f"""; generated by gen/gen.py (own generator script)
; @launch grid=(256,1,1) block=(512,1,1) lds={LDS_BYTES}
.amdgcn_target "amdgcn-amd-amdhsa--gfx950"
.text
.globl {NAME}_kernel
.p2align 8
.type {NAME}_kernel,@function
{NAME}_kernel:
"""
tail = f""".section .rodata,"a"
.p2align 6
.amdhsa_kernel {NAME}_kernel
  .amdhsa_next_free_vgpr 256
  .amdhsa_next_free_sgpr 102
  .amdhsa_accum_offset 256
  .amdhsa_group_segment_fixed_size 0
  .amdhsa_kernarg_size 104
  .amdhsa_user_sgpr_count 2
  .amdhsa_user_sgpr_kernarg_segment_ptr 1
  .amdhsa_system_sgpr_workgroup_id_x 1
.end_amdhsa_kernel
"""
open(OUT, "w").write(head + a.text() + tail)
print("wrote", OUT, "instrs", sum(1 for c in a.L if c.states))
```

```python
import sys, struct, math
from asmdsl import Asm

NAME = "gated_mix__linear_kernel_hedgehog__grouped_kv_mqa__prompt"
OPT = {}
OUT = f"cdna_kernels/{NAME}.s"
for x in sys.argv[1:]:
    if x.startswith('--'):
        k, _, v = x[2:].partition('=')
        OPT[k] = v if v else '1'
    else: OUT = x
STAMP = 'stamp' in OPT
NB1 = int(OPT.get('nb1', 1))
GAPS = [int(c) for c in OPT.get('gaps', '3337')]
PRA, PRH, PRL, PRK = [int(c) for c in OPT.get('prio', '1200')]

def f2u(x): return struct.unpack('<I', struct.pack('<f', x))[0]
LOG2E = math.log2(math.e)
CQ = LOG2E / math.sqrt(28.0)

FKV, FRP_, FL2, FL4, FL5, EPO = 0x0, 0x8000, 0x10000, 0x20000, 0xa0000, 0x5f000
WPH = 0x2c0000
FRP = 0xc0000
KV, WR, KVP, OA, OB, STP = 0x60000, 0x100000, 0x300000, 0x400000, 0x600000, 0x800000
WS_SIZE = 0x900000
L_WQ = 114688
L_WKV = 114688
L_DUM = 149504
L_RP = 152576
L_MISC = 162688
L_WA = 0
L_PHI = 86016
L_VX = 104448
L_KVF = 143360
L_WPHI = 147456
L_QF = L_RP
L_WOA = 0
L_WOB = 57344
L_OX = 60416
L_FR = [109568, 126976, 144384, 43008]
C_WA, C_WAQ, C_S2, C_S3, C_KM, C_OX, C_WOA, C_AD = 0, 4, 8, 12, 16, 24, 28, 32
C_M, C_WQ, C_RD, C_WV, C_XF = 36, 40, 44, 48, 52
NI = int(OPT.get('ni', 2))
GP = int(OPT.get('gp', 5))
PRR = int(OPT.get('prr', 0))
PRP = int(OPT.get('prp', 2))
INI = int(OPT.get('ini', 1))
WAA = int(OPT.get('waa', 2))
C_G, C_Q = 56, 60
DEP = int(OPT.get('dep', 2))
PSL = int(OPT.get('psl', 2))
FS = int(OPT.get('fs', 4))
FS2 = int(OPT.get('fs2', 7))
M_NQ, M_G = 128, 640
LDS_BYTES = 163840
SPIN = 100000

a = Asm()
_raw = Asm.__call__
import re as _re
UNPK = [OPT.get('pk', '1') == '0']
def _split_pk(line):
    m = _re.match(r'v_pk_(add|mul|fma)_f32 (.*)$', line.strip())
    if not m or not UNPK[0]: return line
    op, rest = m.groups()
    hi = [1, 1, 1]
    mm = _re.search(r'op_sel_hi:\[([01,]+)\]', rest)
    if mm:
        hi = [int(x) for x in mm.group(1).split(',')] + [1]
        rest = rest[:mm.start()].strip()
    ops = [o.strip() for o in rest.split(',')]
    def el(o, k):
        t, lo = o[0], int(o[2:o.index(':')])
        return f"{t}{lo + k}"
    out = []
    for k in range(2):
        src = [el(o, k if hi[i] else 0) for i, o in enumerate(ops[1:])]
        if op != 'fma' and src[1][0] == 's': src = [src[1], src[0]]
        out.append(f"v_{op}_f32 {el(ops[0], k)}, " + ", ".join(src))
    return "\n".join(out)
def _call(self, text):
    _raw(self, "\n".join(_split_pk(l) for l in text.split("\n")))
Asm.__call__ = _call
uid = [0]
def lab(p):
    uid[0] += 1
    return f"L_{p}_{uid[0]}"
def capture(fn):
    keep = a.L; a.L = []
    fn()
    got = a.L; a.L = keep
    return got
def groups(fn_list):
    return [capture(f) for f in fn_list]
def merge(main, grp, start=0):
    n = len(main) - start
    pos = [start + (i * n) // len(grp) for i in range(len(grp))]
    k = 0
    for i, ins in enumerate(main):
        while k < len(grp) and pos[k] == i:
            a.L.extend(grp[k]); k += 1
        a.L.append(ins)
    assert k == len(grp)
def vr(b, n): return f"v[{b}:{b+n-1}]"
def srd(r, lo, size):
    a(f"""s_mov_b32 s{r}, s{lo}
    s_mov_b32 s{r+1}, s{lo+1}
    s_mov_b32 s{r+2}, {size}
    s_mov_b32 s{r+3}, 0x00020000""")
def stamp(i):
    if STAMP:
        if 'cyc' in OPT:
            if i == 0: a("s_memtime s[100:101]\n s_waitcnt lgkmcnt(0)\n s_mov_b32 s80, 1")
            else: a(f"s_memtime s[98:99]\n s_waitcnt lgkmcnt(0)\n s_sub_u32 s{80+i}, s98, s100")
        else:
            a(f"s_memrealtime s[98:99]\n s_waitcnt lgkmcnt(0)\n s_mov_b32 s{80+i}, s98")

V_IDX, V_L16, V_MISC, V_ONE, V_NON = 240, 241, 242, 243, 248
def poll_issue(vaddr, soff, vd, n=2):
    a(f"buffer_load_dwordx{n} {vr(vd,n)}, v{vaddr}, s[48:51], {soff} offen sc1")
def poll(vaddr, soff, vd, mask=None, n=2, pre=False):
    L, C, D = lab("poll"), lab("pollc"), lab("polld")
    a("s_mov_b32 s70, 0")
    if mask is not None: a(f"s_mov_b64 exec, {mask}")
    if pre: a(f"s_branch {C}")
    a.label(L)
    poll_issue(vaddr, soff, vd, n)
    a.label(C)
    L1 = lab("poll1")
    a(f"""s_waitcnt vmcnt(0)
    v_cmp_ne_u64 vcc, s[42:43], {vr(vd,2)}
    s_cbranch_vccz {D}
    s_mov_b64 s[24:25], vcc
    s_ff1_i32_b64 s71, vcc
    s_lshl_b64 exec, 1, s71""")
    a.label(L1)
    a(f"s_sleep {PSL}")
    poll_issue(vaddr, soff, vd, n)
    a(f"""s_add_u32 s70, s70, 1
    s_cmp_ge_u32 s70, {SPIN}
    s_cbranch_scc1 {D}
    s_waitcnt vmcnt(0)
    v_cmp_ne_u64 vcc, s[42:43], {vr(vd,2)}
    s_cbranch_vccnz {L1}
    s_andn2_b64 s[24:25], s[24:25], exec
    s_cbranch_scc0 {D}
    s_mov_b64 exec, s[24:25]
    s_branch {L}""")
    a.label(D)
    a("s_mov_b64 exec, -1")
def spoll(soffs, n):
    L, D = lab("sp"), lab("spd")
    a("s_mov_b32 s70, 0")
    a.label(L)
    for g, so in enumerate(soffs):
        a(f"s_load_dwordx{n} s[{16+g*n}:{16+g*n+n-1}], s[40:41], s{so} glc")
    a("s_waitcnt lgkmcnt(0)")
    tot = n * len(soffs)
    for k in range(0, tot, 2): a(f"s_xor_b64 s[{16+k}:{17+k}], s[{16+k}:{17+k}], s[34:35]")
    for k in range(2, tot, 2): a(f"s_or_b64 s[16:17], s[16:17], s[{16+k}:{17+k}]")
    a(f"""s_cbranch_scc0 {D}
    s_sleep {PSL}
    s_add_u32 s70, s70, 1
    s_cmp_lt_u32 s70, {SPIN}
    s_cbranch_scc1 {L}""")
    a.label(D)
def lds_signal(c):
    a(f"""s_mov_b64 exec, 1
    ds_add_u32 v{V_MISC}, v{V_ONE} offset:{c}
    s_mov_b64 exec, -1""")
def lds_wait(c, target, vt=244, wide=False, sleep=True):
    L, D = lab("lw"), lab("lwd")
    a("s_mov_b32 s70, 0")
    a.label(L)
    if wide: a(f"ds_read_b64 v[{vt}:{vt+1}], v{V_MISC} offset:{c}")
    else: a(f"ds_read_b32 v{vt}, v{V_MISC} offset:{c}")
    a(f"""s_waitcnt lgkmcnt(0)
    v_readfirstlane_b32 s71, v{vt}
    s_cmp_ge_u32 s71, {target}
    s_cbranch_scc1 {D}""")
    if sleep or 'allsleep' in OPT: a("s_sleep 1")
    a(f"""s_add_u32 s70, s70, 1
    s_cmp_lt_u32 s70, {SPIN*8}
    s_cbranch_scc1 {L}""")
    a.label(D)
def flag_store(sreg, n=2):
    a(f"""v_mov_b32 v246, 0
    s_mov_b64 exec, 1
    buffer_store_dword{'x%d' % n if n > 1 else ''} {vr(V_NON,n) if n > 1 else 'v%d' % V_NON}, v246, s[48:51], s{sreg} offen sc1
    s_mov_b64 exec, -1""")
def nonce_ready():
    a(f"""s_add_u32 s42, s42, 0x7f4a7c15
    s_addc_u32 s43, s43, 0x9e3779b9
    v_mov_b32 v{V_NON}, s42
    v_mov_b32 v{V_NON+1}, s43
    s_lshl_b32 s39, s42, 16""")
def mrow(vd, vsrc, t0, t1):
    a(f"""v_mul_u32_u24 v{t0}, 37, v{vsrc}
    v_lshrrev_b32 v{t0}, 8, v{t0}
    v_mul_u32_u24 v{t1}, 7, v{t0}
    v_sub_u32 v{t1}, v{vsrc}, v{t1}
    v_cmp_eq_u32 vcc, 4, v{t0}
    v_cndmask_b32 v{t0}, v{t0}, v{t1}, vcc
    v_cndmask_b32 v{t1}, v{t1}, 7, vcc
    v_and_b32 v{vd}, 4, v{t1}
    v_add_u32 v{vd}, v{vd}, v{t1}
    v_and_b32 v{t1}, 1, v{t0}
    v_lshl_add_u32 v{vd}, v{t1}, 2, v{vd}
    v_lshrrev_b32 v{t0}, 1, v{t0}
    v_lshl_add_u32 v{vd}, v{t0}, 4, v{vd}""")
def mod7(s):
    a(f"s_sub_u32 s8, s{s}, 7\n s_cmp_ge_u32 s{s}, 7\n s_cselect_b32 s{s}, s8, s{s}")

MF32 = "v_mfma_f32_32x32x16_bf16"
MF16 = "v_mfma_f32_16x16x32_bf16"
SMF = "v_smfmac_f32_32x32x32_bf16"
XF, WF = 112, 224
Q, O, S, KVR = 16, 48, 112, 176

if STAMP:
    for i in range(16): a(f"s_mov_b32 s{80+i}, 0")
stamp(0)
a("""s_load_dwordx16 s[16:31], s[0:1], 0
s_load_dwordx8 s[32:39], s[0:1], 64
s_load_dwordx2 s[40:41], s[0:1], 96
s_cmp_ge_u32 s2, 256
s_cbranch_scc1 L_end
v_lshrrev_b32 v2, 6, v0
v_and_b32 v1, 63, v0
v_readfirstlane_b32 s3, v2""")
a(f"""v_mov_b32 v{V_MISC}, {L_MISC}
v_mov_b32 v18, 0
v_mov_b32 v17, 0
v_lshl_add_u32 v10, v0, 2, v{V_MISC}
v_cmp_gt_u32 vcc, 16, v0
s_and_saveexec_b64 s[8:9], vcc
ds_write_b32 v10, v18
s_mov_b64 exec, -1""")
a("""s_and_b32 s8, s2, 7
s_lshr_b32 s9, s2, 3
s_lshr_b32 s4, s8, 1
s_lshl_b32 s4, s4, 2
s_and_b32 s10, s9, 3
s_add_u32 s4, s4, s10
s_and_b32 s5, s8, 1
s_lshl_b32 s5, s5, 3
s_lshr_b32 s58, s9, 2
s_add_u32 s5, s5, s58
s_lshr_b32 s6, s5, 1
s_and_b32 s7, s3, 3
s_lshl_b32 s10, s10, 1
s_add_u32 s58, s58, s10""")
mod7(58)
a("s_lshr_b32 s13, s3, 2\n s_sub_u32 s13, s3, s13\n s_add_u32 s59, s58, s13")
mod7(59)
a(f"""v_lshlrev_b32 v{V_L16}, 4, v1
v_lshrrev_b32 v5, 3, v1
v_mul_u32_u24 v5, 896, v5
v_lshrrev_b32 v6, 4, v1
v_and_b32 v7, 7, v1
v_xor_b32 v7, v7, v6
v_lshl_add_u32 v3, v7, 4, v5
v_xor_b32 v7, 4, v7
v_lshl_add_u32 v4, v7, 4, v5
v_add_u32 v4, 7168, v4
s_mul_i32 s11, s4, 114688
s_mul_i32 s9, s6, 14336
s_add_u32 s9, s9, s11
s_lshl_b32 s10, s59, 7
s_add_u32 s9, s9, s10
s_lshl_b32 s77, s13, 14
s_lshl_b32 s12, s6, 11
s_add_u32 s77, s77, s12
s_mul_i32 s14, s59, 3584
s_add_u32 s76, s14, {L_WKV}
s_mov_b32 s46, 1835008
s_mov_b32 s47, 0x00020000
s_mov_b32 s62, 25088
s_mov_b32 s63, 0x00020000
s_mov_b32 s55, 0x00020000""")
a(f"""s_lshr_b32 s66, s2, 3
s_mov_b32 s67, s7
s_and_b32 s68, s2, 6
s_lshl_b32 s68, s68, 1
s_and_b32 s69, s2, 1
s_cmp_eq_u32 s67, 3
s_cselect_b32 s15, 1, 3
s_cselect_b32 s10, 0, s67
s_mul_i32 s54, s15, 401408
s_mul_i32 s15, s15, 896
s_mul_i32 s10, s10, 896
s_lshl_b32 s56, s66, 1
s_add_u32 s56, s56, s69
s_lshl_b32 s78, s56, 4
s_lshl_b32 s56, s56, 3
s_mul_i32 s56, s56, s15
s_add_u32 s56, s56, s10
s_mul_i32 s10, s68, 56
s_add_u32 s56, s56, s10
s_lshl_b32 s57, s7, 11
s_add_u32 s57, s57, {L_RP}
v_and_b32 v8, 15, v1
v_min_u32 v7, 13, v8
v_mul_lo_u32 v5, v6, s15
v_lshl_add_u32 v5, v7, 4, v5
s_cmp_lt_u32 s2, 224
s_cselect_b32 s79, 4, 0
s_cmp_eq_u32 s67, 3
s_waitcnt lgkmcnt(0)
s_cselect_b32 s52, s26, s18
s_cselect_b32 s53, s27, s19
s_mov_b32 s44, s16
s_mov_b32 s45, s17
s_cmp_ge_u32 s3, s79
s_cbranch_scc1 L_norp1
s_mov_b32 m0, s57
s_lshl_b32 s10, s15, 2
buffer_load_dwordx4 v5, s[52:55], s56 offen lds
s_add_u32 m0, s57, 1024
s_add_u32 s56, s56, s10
buffer_load_dwordx4 v5, s[52:55], s56 offen lds
s_load_dwordx4 s[72:75], s[34:35], s78""")
a.label("L_norp1")
a(f"""s_load_dwordx2 s[42:43], s[40:41], {EPO}
s_cmp_eq_u32 s3, 3
s_cbranch_scc1 L_w3
s_bitcmp1_b32 s5, 0
s_cselect_b32 s60, s30, s28
s_cselect_b32 s61, s31, s29
s_mov_b32 m0, s76""")
for i in range(4): a(f"buffer_load_dwordx4 v{V_L16}, s[60:63], s14 offen offset:{1024*i} lds")
a("""s_mov_b32 m0, s77
s_add_u32 s10, s77, 1024
buffer_load_dwordx4 v3, s[44:47], s9 offen lds
s_mov_b32 m0, s10
s_nop 0
buffer_load_dwordx4 v4, s[44:47], s9 offen lds
s_branch L_b0""")
a.label("L_w3")
if 'touch' in OPT:
    srd(48, 40, WS_SIZE)
    a("""v_lshlrev_b32 v30, 21, v1
    s_lshl_b32 s8, s2, 7
    s_add_u32 s8, s8, 0xe0000
    s_mov_b64 exec, 3
    buffer_load_dword v31, v30, s[48:51], s8 offen
    s_mov_b64 exec, -1""")
a(f"""s_sub_u32 s8, s2, 224
s_cmp_ge_u32 s8, 16
s_cbranch_scc1 L_b0
s_mov_b32 s60, s20
s_mov_b32 s61, s21
s_mul_i32 s9, s8, 1568
s_mov_b32 m0, s57
s_nop 0
buffer_load_dwordx4 v{V_L16}, s[60:63], s9 offen lds
buffer_load_dwordx4 v{V_L16}, s[60:63], s9 offen offset:1024 lds""")
a.label("L_b0")
a("s_barrier")
srd(48, 40, WS_SIZE)
a(f"""s_mov_b32 s64, 0
s_mov_b32 s65, -1
v_mov_b32 v{V_ONE}, 1
v_mov_b32 v{V_IDX}, 0xdddddddd
s_cmp_lt_u32 s3, 4
s_cbranch_scc1 L_a1""")
a(f"""s_lshl_b32 s8, s7, 1
s_mul_i32 s66, s8, 14336
s_add_u32 s66, s66, s11
s_add_u32 s67, s66, 14336
s_lshl_b32 s68, s7, 12
s_add_u32 s69, s68, 2048
s_cmp_eq_u32 s8, s6
s_cselect_b32 s66, 0x7f000000, s66
s_cselect_b32 s68, {L_DUM}, s68
s_cselect_b32 s56, 0, 16384
s_add_u32 s8, s8, 1
s_cmp_eq_u32 s8, s6
s_cselect_b32 s67, 0x7f000000, s67
s_cselect_b32 s69, {L_DUM}, s69
s_cselect_b32 s57, 0, 16384
s_mov_b32 s13, s58""")
def issue_pos():
    a("s_lshl_b32 s10, s13, 7")
    for n in range(2):
        a(f"""s_mov_b32 m0, s{68+n}
        s_add_u32 s8, s10, s{66+n}
        buffer_load_dwordx4 v3, s[44:47], s8 offen lds
        s_add_u32 m0, s{68+n}, 1024
        s_add_u32 s{68+n}, s{68+n}, s{56+n}
        buffer_load_dwordx4 v4, s[44:47], s8 offen lds""")
    a("""s_add_u32 s13, s13, 1
    s_cmp_eq_u32 s13, 7
    s_cselect_b32 s13, 0, s13""")
if 'cpf' in OPT:
    a("""s_cmp_lg_u32 s3, 7
    s_cbranch_scc1 L_nocpf
    s_cmp_ge_u32 s2, 32
    s_cbranch_scc1 L_nocpf
    s_getpc_b64 s[8:9]
    s_lshr_b32 s10, s2, 3
    s_lshl_b32 s10, s10, 13
    v_lshl_add_u32 v30, v1, 7, s10
    v_cmp_gt_u32 vcc, CODE_LEFT, v30
    s_and_saveexec_b64 s[72:73], vcc
    s_cbranch_execz L_cpf2""")
    a.label("L_cpf0")
    a("global_load_dword v31, v30, s[8:9]")
    a.label("L_cpf2")
    a("s_mov_b64 exec, -1")
    a.label("L_nocpf")
for p in range(NI): issue_pos()
def mini_addrs():
    a(f"""v_lshrrev_b32 v9, 4, v1
    v_lshrrev_b32 v10, 1, v8
    v_xor_b32 v10, v10, v9
    v_lshl_add_u32 v11, v8, 7, s77
    v_lshl_add_u32 v12, v10, 4, v11
    v_xor_b32 v13, 64, v12
    v_lshrrev_b32 v10, 2, v8
    v_lshl_add_u32 v10, v9, 3, v10
    v_mul_u32_u24 v10, 56, v10
    v_and_b32 v11, 3, v1
    v_lshl_add_u32 v14, v11, 3, v10
    v_add_u32 v14, s76, v14
    v_add_u32 v15, s76, v{V_L16}""")
mini_addrs()
stamp(1)
a("s_waitcnt lgkmcnt(0)")
nonce_ready()
a(f"s_waitcnt vmcnt({4*NI})\n s_branch L_mini")

a.label("L_a1")
a("s_setprio 3")
mini_addrs()
a("v_and_b32 v20, 31, v1\n v_lshrrev_b32 v21, 5, v1")
mrow(18, 20, 22, 23)
a(f"""v_lshrrev_b32 v22, 2, v8
v_and_b32 v23, 3, v1
v_lshlrev_b32 v23, 3, v23
v_and_b32 v24, 16, v1
v_lshl_add_u32 v23, v24, 1, v23
v_add_u32 v23, s57, v23
v_lshl_add_u32 v16, v22, 8, v23
v_mul_u32_u24 v25, 56, v21
v_add_u32 v16, v16, v25
v_lshl_add_u32 v22, v21, 2, v22
v_mul_u32_u24 v22, 56, v22
v_add_u32 v26, v22, v23
s_cmp_eq_u32 s67, 2
s_cselect_b64 vcc, -1, 0
v_cndmask_b32 v17, v20, v18, vcc
v_lshlrev_b32 v17, 4, v17
v_mul_u32_u24 v25, 28672, v21
v_add_u32 v17, v17, v25
s_lshl_b32 s56, s67, 4
s_add_u32 s56, s56, s68
s_mul_i32 s56, s56, 28
s_add_u32 s56, s56, s66
s_lshl_b32 s56, s56, 1
s_add_u32 s56, s56, s69
s_lshl_b32 s56, s56, 9
s_add_u32 s56, s56, {WR}
s_add_u32 s57, s56, 57344
s_and_b32 s8, s66, 3
s_add_u32 s8, s8, s68
s_lshl_b32 s8, s8, 2
s_add_u32 s8, s8, s67
s_lshl_b32 s8, s8, 3
s_lshr_b32 s9, s66, 2
s_add_u32 s8, s8, s9
s_lshl_b32 s8, s8, 1
s_add_u32 s8, s8, s69
s_lshl_b32 s78, s8, {FS}
s_add_u32 s78, s78, {FRP}
s_cmp_eq_u32 s67, 0
s_cselect_b32 s66, 0x10000000, 0
s_mov_b32 s67, s66
s_mov_b32 s68, 0xf0000000
s_mov_b32 s69, 0xf0000000
v_lshl_add_u32 v18, v21, 5, v18
v_lshlrev_b32 v27, 4, v18
""")
stamp(1)
a("s_waitcnt lgkmcnt(0)")
nonce_ready()
a("s_waitcnt vmcnt(0)\n s_cmp_lg_u32 s3, 3\n s_cbranch_scc1 L_mini")
a("s_cmp_eq_u32 s79, 0\n s_cbranch_scc1 L_phi")
def rp_piece():
    stamp(11)
    for e in range(2):
        a(f"ds_read_b64_tr_b16 {vr(32+4*e,2)}, v16 offset:{112*e}")
        a(f"ds_read_b64_tr_b16 {vr(34+4*e,2)}, v16 offset:{112*e+1024}")
    for i in range(4): a(f"v_mov_b32 v{28+i}, s{72+i}")
    for i in range(4): a(f"v_cndmask_b32 v{28+i}, 0, v{28+i}, s[66:67]")
    for e in range(2):
        a(f"s_waitcnt lgkmcnt({2 - 2*e})")
        for i in range(4): a(f"v_cndmask_b32 v{32+4*e+i}, v{32+4*e+i}, v{28+i}, s[68:69]")
        a(f"buffer_store_dwordx4 {vr(32+4*e,4)}, v17, s[48:51], s{56+e} offen sc1")
rp_piece()
a("s_branch L_red")

a.label("L_mini")
stamp(2)
XM, WM, DM = 112, 120, 136
for u in range(2):
    a(f"ds_read_b128 {vr(XM+4*u,4)}, v{12+u}")
    for tl in range(2):
        a(f"ds_read_b64_tr_b16 {vr(WM+8*u+4*tl,2)}, v14 offset:{1792*u+32*tl}")
        a(f"ds_read_b64_tr_b16 {vr(WM+8*u+4*tl+2,2)}, v14 offset:{1792*u+32*tl+224}")
a("s_bitcmp1_b32 s5, 0\n s_cbranch_scc1 L_mv")
def mini_mfma(isv):
    for u in range(2):
        a(f"s_waitcnt lgkmcnt({5 - 5*u})")
        for tl in range(2):
            A, B = vr(WM+8*u+4*tl, 4), vr(XM+4*u, 4)
            if isv: A, B = B, A
            a(f"{MF16} {vr(DM+4*tl,4)}, {A}, {B}, {'0' if u == 0 else vr(DM+4*tl,4)}")
mini_mfma(False)
a("s_branch L_mw")
a.label("L_mv")
mini_mfma(True)
a.label("L_mw")
a(f"""s_nop 7
ds_write_b128 v15, {vr(DM,4)} offset:1024
ds_write_b128 v15, {vr(DM+4,4)} offset:2048""")
lds_signal(C_M)
stamp(3)
a("""s_cmp_ge_u32 s3, 4
s_cbranch_scc1 L_helper
s_cmp_eq_u32 s79, 0
s_cbranch_scc1 L_attn0""")
if 'rpd' in OPT: lds_wait(C_RD, 1)
rp_piece()
def zero_init():
    for i in range(64): a(f"v_mov_b32 v{O+i}, 0")
    for i in range(8): a(f"v_mov_b32 v{KVR+56+i}, 0")
    for i in range(16): a(f"v_mov_b32 v{S+48+i}, 0")
a("s_waitcnt vmcnt(0)")
flag_store(78, 2)
stamp(12)
a("s_branch L_attn0")
a.label("L_phi")
a(f"""s_sub_u32 s8, s2, 224
s_cmp_ge_u32 s8, 16
s_cbranch_scc1 L_red
s_lshl_b32 s56, s8, 11
s_add_u32 s56, s56, {WPH}
s_add_u32 s78, s8, 1024
s_lshl_b32 s78, s78, {FS}
s_add_u32 s78, s78, {FRP}
s_mov_b32 s66, 0xf0000000
s_mov_b32 s67, -1
s_waitcnt vmcnt(0)""")
for i in range(4): a(f"ds_read_b64_tr_b16 {vr(32+2*i,2)}, v26 offset:{8*56*i}")
a("s_waitcnt lgkmcnt(0)")
for i in range(8): a(f"v_cndmask_b32 v{32+i}, v{32+i}, 0, {'s[68:69]' if i < 6 else 's[66:67]'}")
a("""buffer_store_dwordx4 v[32:35], v27, s[48:51], s56 offen sc1
buffer_store_dwordx4 v[36:39], v27, s[48:51], s56 offen offset:1024 sc1
s_mov_b32 s79, 4""")

a.label("L_red")
a(f"v_add_u32 v15, {L_WKV + 1024}, v{V_L16}")
a(f"""s_lshl_b32 s72, s4, 2
s_lshr_b32 s9, s6, 1
s_add_u32 s72, s72, s9
s_lshl_b32 s72, s72, 12
s_add_u32 s72, s72, {KV}
s_lshl_b32 s73, s4, 4
s_add_u32 s73, s73, s5
s_lshl_b32 s73, s73, {FS}
s_and_b32 s9, s6, 1
s_lshl_b32 s10, s9, 10
s_addk_i32 s10, 2048
v_add_u32 v18, s10, v27
v_lshlrev_b32 v19, 10, v21
v_lshl_add_u32 v19, v24, 5, v19
v_lshl_add_u32 v19, v8, 4, v19
s_lshl_b32 s10, s9, 8
v_add_u32 v19, s10, v19
s_bitcmp1_b32 s5, 0
s_cselect_b64 vcc, -1, 0
v_cndmask_b32 v18, v19, v18, vcc
v_mov_b32 v42, 0x3f803f80
v_mov_b32 v43, 0x00003f80""")
lds_wait(C_M, 7, sleep=False)
stamp(4)
for c in range(7):
    a(f"ds_read_b128 {vr(112+8*c,4)}, v15 offset:{3584*c}")
    a(f"ds_read_b128 {vr(116+8*c,4)}, v15 offset:{3584*c+1024}")
lds_signal(C_RD)
for c in range(1, 7):
    a(f"s_waitcnt lgkmcnt({13 - 2*c})")
    UNPK[0] = False
    for k in range(4): a(f"v_pk_add_f32 {vr(112+2*k,2)}, {vr(112+2*k,2)}, {vr(112+8*c+2*k,2)}")
    UNPK[0] = OPT.get('pk', '1') == '0'
a("s_cmp_eq_u32 s79, 0\n s_cbranch_scc1 L_red2\n s_waitcnt vmcnt(0)")
flag_store(78, 2)
stamp(12)
a.label("L_red2")
for k in range(4): a(f"v_cvt_pk_bf16_f32 v{32+k}, v{112+2*k}, v{113+2*k}")
a("s_bitcmp1_b32 s5, 0\n s_cbranch_scc1 L_red_v")
a(f"""s_mov_b32 s66, 0
s_mov_b32 s67, 0xffff0000
v_permlane32_swap_b32 v32, v34
v_permlane32_swap_b32 v33, v35
v_cndmask_b32 v36, v34, 0, s[66:67]
v_cndmask_b32 v37, v35, 0, s[66:67]
v_cndmask_b32 v34, v34, v42, s[66:67]
v_cndmask_b32 v35, v35, v43, s[66:67]
buffer_store_dwordx4 v[32:35], v18, s[48:51], s72 offen sc1
v_mov_b32 v40, 0
v_dot2_f32_bf16 v40, v32, v32, v40
v_dot2_f32_bf16 v40, v33, v33, v40
v_dot2_f32_bf16 v40, v36, v36, v40
v_dot2_f32_bf16 v40, v37, v37, v40
v_mov_b32 v41, v40
v_permlane16_swap_b32 v40, v41
v_add_f32 v40, v40, v41
v_mov_b32 v41, v40
v_permlane32_swap_b32 v40, v41
v_add_f32 v40, v40, v41
v_max_u32_dpp v40, v40, v40 row_ror:8 row_mask:0xf bank_mask:0xf
v_max_u32_dpp v40, v40, v40 row_ror:4 row_mask:0xf bank_mask:0xf
v_max_u32_dpp v40, v40, v40 row_ror:2 row_mask:0xf bank_mask:0xf
v_max_u32_dpp v{V_NON+2}, v40, v40 row_ror:1 row_mask:0xf bank_mask:0xf
s_branch L_pub""")
a.label("L_red_v")
a(f"""s_mov_b32 s66, 0x30000000
s_mov_b32 s67, 0x30000000
s_mov_b32 s68, 0xc0000000
s_mov_b32 s69, 0xc0000000
v_permlane16_swap_b32 v32, v34
v_permlane16_swap_b32 v33, v35""")
for k in range(4): a(f"v_cndmask_b32 v{32+k}, v{32+k}, v42, s[66:67]")
for k in range(4): a(f"v_cndmask_b32 v{32+k}, v{32+k}, 0, s[68:69]")
a(f"""buffer_store_dwordx4 v[32:35], v18, s[48:51], s72 offen sc1
v_mov_b32 v{V_NON+2}, 0""")
a.label("L_pub")
a("s_waitcnt vmcnt(0)")
flag_store(73, 3)
lds_signal(C_G)
stamp(13)
a.label("L_attn0")
if 'exitp3' in OPT: a("s_branch L_done")
a(f"""s_setprio 0
v_and_b32 v8, 31, v1
v_lshlrev_b32 v3, {FS}, v1
s_lshl_b32 s78, s7, {6 + FS}
s_andn2_b32 s9, s5, 3
s_add_u32 s9, s9, s7
s_lshl_b32 s9, s9, 6
v_add_u32 v10, s9, v1
s_add_u32 s9, s5, 1024
v_mov_b32 v11, s9
v_cmp_eq_u32 vcc, 15, v1
v_cndmask_b32 v10, v10, v11, vcc
v_lshlrev_b32 v2, {FS}, v10
s_mov_b32 s79, {FRP}
s_mov_b32 s66, 0
s_mov_b32 s67, 0x3fff0000
s_mov_b32 s68, 0x3fffbfff
s_mov_b32 s69, 0x00003fff""")
for i in range(4):
    a(f"""s_add_u32 s8, s7, {i}
    s_and_b32 s8, s8, 3
    s_lshl_b32 s9, s8, 11
    s_add_u32 s9, s9, {L_QF}
    v_add_u32 v{4+i}, s9, v{V_L16}
""")
a(f"""s_lshl_b32 s8, s7, 16
s_add_u32 s8, s8, {KV}
s_add_u32 s52, s40, s8
s_addc_u32 s53, s41, 0
s_mov_b32 s54, 65536
s_mov_b32 s55, 0x00020000
s_mov_b32 s74, 0""")
def wa_dma(slot, mtx):
    lb = L_WQ if slot == 3 else L_WA + slot*28672
    a(f"""s_add_u32 s8, s5, {16*mtx}
    s_mul_i32 s8, s8, 28672
    s_lshl_b32 s9, s7, 10
    s_add_u32 s8, s8, s9
    s_add_u32 s10, s8, {WR}
    s_mov_b32 s13, s58""")
    for p in range(7):
        a(f"""s_lshl_b32 s8, s13, 12
        s_add_u32 m0, s9, {lb + p*4096}
        s_add_u32 s14, s8, s10
        buffer_load_dwordx4 v{V_L16}, s[48:51], s14 offen sc1 lds
        s_add_u32 s13, s13, 1
        s_cmp_eq_u32 s13, 7
        s_cselect_b32 s13, 0, s13""")
lds_wait(C_G, 1)
if 'xg' in OPT: lds_wait(C_XF, 4 * int(OPT['xg']))
stamp(4)
poll(2, "s79", 254, mask="s[66:67]")
stamp(5)
wa_dma(3, 3)
zero_init()
a("s_waitcnt vmcnt(3)")
lds_signal(C_WQ)
a("s_waitcnt vmcnt(0)")
lds_signal(C_WOA)
poll_issue(3, "s78", 250, 3)
a("s_mov_b64 exec, s[68:69]")
poll_issue(2, "s79", 254)
a("s_mov_b64 exec, -1")
lds_wait(C_XF, 8)
poll(3, "s78", 250, n=3, pre=True)
stamp(6)
def kload(kt, soff, imm):
    b = KVR + 16*(kt & 3)
    a(f"buffer_load_dwordx4 {vr(b,4)}, v{V_L16}, s[52:55], {soff} offen offset:{imm} sc1")
    a(f"buffer_load_dwordx4 {vr(b+4,4)}, v{V_L16}, s[52:55], {soff} offen offset:{imm+1024} sc1")
def vload(kt, soff, imm):
    b = KVR + 16*(kt & 3) + 8
    a(f"buffer_load_dwordx4 {vr(b,4)}, v{V_L16}, s[52:55], {soff} offen offset:{imm} sc1")
    a(f"buffer_load_dwordx4 {vr(b+4,4)}, v{V_L16}, s[52:55], {soff} offen offset:{imm+1024} sc1")
a(f"""v_max_u32_dpp v252, v252, v252 row_ror:8 row_mask:0xf bank_mask:0xf
v_max_u32_dpp v252, v252, v252 row_ror:4 row_mask:0xf bank_mask:0xf
v_max_u32_dpp v252, v252, v252 row_ror:2 row_mask:0xf bank_mask:0xf
s_mov_b32 s8, 0x00010001
s_mov_b32 s9, 0x00010001
s_mov_b64 exec, s[8:9]
ds_max_u32 v{V_MISC}, v252 offset:{C_KM+4}
s_mov_b64 exec, -1""")
lds_signal(C_KM)
poll(2, "s79", 254, mask="s[68:69]", pre=True)
wa_dma(0, 1)
kload(0, "s74", 0); vload(0, "s74", 2048)
a("s_addk_i32 s74, 4096")
wa_dma(1, 2)
a("s_waitcnt vmcnt(11)")
lds_signal(C_WA)
for kt in range(1, 4):
    kload(kt, "s74", 0)
    if kt < 3:
        vload(kt, "s74", 2048)
        a("s_addk_i32 s74, 4096")
a("s_waitcnt vmcnt(10)")
lds_signal(C_WV)
lds_wait(C_Q, 4, sleep=False)
for i in range(4):
    a(f"""ds_read_b128 {vr(Q+8*i,4)}, v{4+i}
    ds_read_b128 {vr(Q+8*i+4,4)}, v{4+i} offset:1024""")
a("s_waitcnt lgkmcnt(6)")
stamp(7)
a(f"s_setprio {PRA}\n s_waitcnt vmcnt(10)")

stamp(8)
if STAMP: a("s_memtime s[96:97]\n s_waitcnt lgkmcnt(0)")
def QK(kt, q, part):
    kb = KVR + 16*(kt & 3) + 4*part
    sb = S + 16*q
    a(f"{MF32} {vr(sb,16)}, {vr(kb,4)}, {vr(Q+8*q+4*part,4)}, {'0' if part == 0 else vr(sb,16)}")
def PV(kt, q, part):
    vb = KVR + 16*(kt & 3) + 8 + 4*part
    a(f"{SMF} {vr(O+16*q,16)}, {vr(vb,4)}, {vr(S+16*q+8*part,8)}, v{V_IDX}")
def EX(q, g):
    st = sum(GAPS[:g]); n = GAPS[g]
    for i in range(n):
        sfx = "_e64" if (n & 1 and i == n - 1) else ""
        a(f"v_exp_f32{sfx} v{S+16*q+st+i}, v{S+16*q+st+i}")
QK(0, 0, 0); QK(0, 0, 1)
a("s_mov_b32 s75, 0\n s_waitcnt lgkmcnt(0)\n s_nop 7\n s_nop 0")
a(".p2align 3")
a.label("L_attn")
for kt in range(4):
    for q in range(4):
        nk, nq = (kt, q + 1) if q < 3 else (kt + 1, 0)
        pk, pq = (kt, q - 1) if q > 0 else (kt - 1, 3)
        if q == 3: a("s_waitcnt vmcnt(10)\n s_addk_i32 s74, 4096")
        QK(nk, nq, 0); EX(q, 0)
        QK(nk, nq, 1); EX(q, 1)
        if q == 2: kload(kt, "s76", 0)
        PV(pk, pq, 0); EX(q, 2)
        PV(pk, pq, 1); EX(q, 3)
        if q == 0:
            vload(kt - 1, "s74", 2048)
            a("s_add_u32 s76, s74, 4096")
a("""s_add_u32 s75, s75, 1
s_cmp_lt_u32 s75, 4
s_cbranch_scc1 L_attn""")
PV(3, 3, 0); PV(3, 3, 1)
if STAMP: a("s_memtime s[98:99]\n s_waitcnt lgkmcnt(0)\n s_sub_u32 s94, s98, s96\n s_add_u32 s94, s94, s80")
stamp(9)
for i in range(1, 4):
    a(f"""s_add_u32 s8, s7, {i}
    s_and_b32 s8, s8, 3
    s_mul_i32 s8, s8, 12288
    s_add_u32 s8, s8, {L_OX + (i-1)*4096}
    v_add_u32 v{2+i}, s8, v{V_L16}""")
a("s_setprio 3")
if 'nohelp' not in OPT: lds_wait(C_S3, 4, sleep=False)
for i in range(1, 4):
    for qd in range(4): a(f"ds_write_b128 v{2+i}, {vr(O+16*i+4*qd,4)} offset:{1024*qd}")
lds_signal(C_OX)
if 'pro' not in OPT: stamp(1)
a(f"""s_mul_i32 s8, s7, 12288
s_add_u32 s8, s8, {L_OX}
v_add_u32 v10, s8, v{V_L16}
s_lshl_b32 s8, s7, 7
s_add_u32 s8, s8, {L_MISC + M_G}
v_lshl_add_u32 v11, v8, 2, s8
ds_read_b32 v12, v11
s_lshl_b32 s8, s4, 2
s_add_u32 s8, s8, s7
s_lshl_b32 s8, s8, 4
s_add_u32 s8, s8, s5
s_lshl_b32 s9, s8, 11
s_add_u32 s9, s9, {OB}
s_andn2_b32 s11, s8, 15
s_add_u32 s11, s11, s8
s_lshl_b32 s11, s11, 2
s_add_u32 s11, s11, {FL5}""")
lds_wait(C_OX, 4, sleep=False)
if 'pro' not in OPT: stamp(2)
for i in range(12): a(f"ds_read_b128 {vr(S+4*i,4)}, v10 offset:{1024*i}")
for i in range(3):
    a(f"s_waitcnt lgkmcnt({8 - 4*i})")
    for k in range(8): a(f"v_pk_add_f32 {vr(O+2*k,2)}, {vr(O+2*k,2)}, {vr(S+16*i+2*k,2)}")
a(f"""v_rcp_f32 v14, v{O+7}
v_mov_b32 v{O+7}, 0
v_mul_f32 v14, v14, v12""")
def publish_o(src, pk, sdata, sflag):
    for k in range(4): a(f"v_cvt_pk_bf16_f32 v{pk+k}, v{src+2*k}, v{src+2*k+1}")
    a(f"v_or_b32 v{pk+3}, s39, v{pk+3}")
    a(f"buffer_store_dwordx4 {vr(pk,4)}, v{V_L16}, s[48:51], s{sdata[0]} offen sc1")
    for k in range(4, 8): a(f"v_cvt_pk_bf16_f32 v{pk+k}, v{src+2*k}, v{src+2*k+1}")
    a(f"v_or_b32 v{pk+7}, s39, v{pk+7}")
    a(f"buffer_store_dwordx4 {vr(pk+4,4)}, v{V_L16}, s[48:51], s{sdata[1]} offen offset:{sdata[2]} sc1")
    flag_store(sflag, 1)
for k in range(8): a(f"v_pk_mul_f32 {vr(O+2*k,2)}, {vr(O+2*k,2)}, v[14:15] op_sel_hi:[1,0]")
a(f"v_mov_b32 v{O+7}, 0\n v_mov_b32 v{O+15}, 0")
publish_o(O, Q, (9, 9, 1024), 11)
lds_signal(C_AD)
stamp(10)
a("s_branch L_final")

a.label("L_helper")
FA, QA = 12, 32
for p in range(NI, 7): issue_pos()
a(f"""v_and_b32 v8, 31, v1
v_lshrrev_b32 v9, 5, v1
v_lshrrev_b32 v10, 1, v8
v_and_b32 v10, 7, v10
v_xor_b32 v10, v10, v9
s_lshl_b32 s8, s7, 12
v_lshl_add_u32 v11, v8, 7, s8
v_lshl_add_u32 v{FA}, v10, 4, v11
v_xor_b32 v{FA+1}, 32, v{FA}
v_xor_b32 v{FA+2}, 64, v{FA}
v_xor_b32 v{FA+3}, 96, v{FA}
v_and_b32 v2, 15, v1
v_lshrrev_b32 v2, 2, v2
v_and_b32 v6, 3, v1
v_lshlrev_b32 v6, 3, v6
v_and_b32 v10, 16, v1
v_lshl_add_u32 v6, v10, 1, v6
v_add_u32 v7, {L_WQ}, v{V_L16}
s_mov_b32 s68, {f2u(CQ):#x}
s_mov_b32 s69, s68
s_lshl_b32 s8, s7, 11
s_add_u32 s8, s8, {L_QF}
v_add_u32 v4, s8, v{V_L16}
s_lshl_b32 s8, s7, 7
s_add_u32 s8, s8, {L_MISC + M_NQ}
v_lshl_add_u32 v5, v8, 2, s8
s_mov_b32 s72, {f2u(LOG2E):#x}
s_mov_b32 s73, s72
s_mov_b32 s74, {f2u(-LOG2E):#x}
s_mov_b32 s75, s74
s_and_b32 s77, s5, 1
s_lshr_b32 s78, s5, 1
v_lshrrev_b32 v10, 3, v1
v_mul_u32_u24 v10, 896, v10
v_and_b32 v11, 7, v1
v_lshl_add_u32 v247, v11, 4, v10""")
lds_wait(C_M, 7)
stamp(4)
for p in range(7):
    a(f"s_waitcnt vmcnt({4*(6-p)})")
    if p == 4:
        for i in range(4): a(f"v_add_u32 v{FA+i}, 65536, v{FA+i}")
    if p >= 3: a("s_waitcnt lgkmcnt(8)")
    for u in range(4): a(f"ds_read_b128 {vr(XF+16*p+4*u,4)}, v{FA+u} offset:{(p & 3)*16384}")
    if p in (3, 6): lds_signal(C_XF)
stamp(5)
if 'exitp3' in OPT: a("s_branch L_done")
WP = 80
stubs = []
AK, AV = 48, 64
def gemm_fast(vaddr, base, acc, s0, s1, ring, nb):
    def rd(s): a(f"ds_read_b128 {vr(ring+4*(s % nb),4)}, v{vaddr} offset:{base + 1024*s}")
    dpt = nb - 1
    for s in range(s0, min(s1, s0 + dpt)): rd(s)
    for s in range(s0, s1):
        if s + dpt < s1: rd(s + dpt)
        a(f"s_waitcnt lgkmcnt({min(dpt, s1 - 1 - s)})")
        a(f"{MF32} {vr(acc,16)}, {vr(ring+4*(s % nb),4)}, {vr(XF+4*s,4)}, {'0' if s == 0 else vr(acc,16)}")
def gemm_groups(vaddr, base, acc, w_is_a):
    def rd(s): a(f"ds_read_b128 {vr(WF+4*(s&3),4)}, v{vaddr} offset:{base + 1024*s}")
    def mk(s):
        def f():
            if s == 0:
                for k in range(3): rd(k)
            if s + 3 < 28: rd(s + 3)
            a(f"s_waitcnt lgkmcnt({min(3, 27 - s)})")
            A, B = vr(WF+4*(s&3), 4), vr(XF+4*s, 4)
            if not w_is_a: A, B = B, A
            a(f"{MF32} {vr(acc,16)}, {A}, {B}, {'0' if s == 0 else vr(acc,16)}")
        return f
    return groups([mk(s) for s in range(28)])
lds_wait(C_WQ, 4, sleep=False)
stamp(7)
gemm_fast(7, 0, QA, 0, 16, 48, 8)
if 'pro2' in OPT: stamp(1)
lds_wait(C_WOA, 4, sleep=False)
if 'pro2' in OPT: stamp(2)
gemm_fast(7, 0, QA, 16, 28, 48, 8)
if 'pro2' in OPT: stamp(3)
def q_epi():
    for i in range(8): a(f"v_pk_mul_f32 {vr(QA+2*i,2)}, {vr(QA+2*i,2)}, s[68:69]")
    for i in range(8): a(f"v_cvt_pk_bf16_f32 v{Q+i}, v{QA+2*i}, v{QA+2*i+1}")
    a("v_mov_b32 v12, 0\n v_mov_b32 v13, 0")
    for i in range(4):
        a(f"v_dot2_f32_bf16 v12, v{Q+i}, v{Q+i}, v12\n v_dot2_f32_bf16 v13, v{Q+4+i}, v{Q+4+i}, v13")
    a("""v_add_f32 v12, v12, v13
    v_mov_b32 v13, v12
    v_permlane32_swap_b32 v12, v13
    v_add_f32 v12, v12, v13
    v_sqrt_f32 v12, v12""")
q_epi()
a(f"ds_write_b128 v4, {vr(Q,4)}")
lds_wait(C_KM, 4, 244, wide=True, sleep=False)
a(f"""v_sqrt_f32 v245, v245
v_mov_b32 v246, 0x42000000
v_mul_f32 v245, {f2u(-(1.0 + 2.0**-6)):#x}, v245
v_fma_f32 v12, v12, v245, v246
v_cvt_pk_bf16_f32 v12, v12, 0
v_cndmask_b32 v{Q+6}, v{Q+6}, v12, s[64:65]
ds_write_b128 v4, {vr(Q+4,4)} offset:1024""")
lds_signal(C_Q)
stamp(6)
if 'nohelp' in OPT: a("s_branch L_final")
lds_wait(C_WA, 4, sleep=False)
a(f"""s_lshl_b32 s8, s5, 11
s_add_u32 s8, s8, {WPH}
buffer_load_dwordx4 {vr(WP,4)}, v{V_L16}, s[48:51], s8 offen sc1
buffer_load_dwordx4 {vr(WP+4,4)}, v{V_L16}, s[48:51], s8 offen offset:1024 sc1
s_setprio {PRK}""")
gemm_fast(V_L16, L_WA, AK, 0, 28, 16, 8)
a(f"s_setprio {PRH}")
if 'pro' not in OPT: stamp(1)
a("s_waitcnt vmcnt(0)")
wa_dma(2, 0)
if 'nowarm' not in OPT:
    a("""s_lshr_b32 s8, s2, 3
    s_and_b32 s9, s8, 15
    s_lshl_b32 s9, s9, 2
    s_add_u32 s9, s9, s7
    s_mul_i32 s9, s9, 6272
    s_and_b32 s10, s2, 1
    s_lshl_b32 s10, s10, 9
    s_add_u32 s9, s9, s10
    s_bitcmp1_b32 s8, 4
    s_cselect_b32 s60, s32, s22
    s_cselect_b32 s61, s33, s23
    s_mov_b32 s62, 401408
    s_mov_b32 s63, 0x00020000
    v_lshrrev_b32 v10, 2, v1
    v_mul_u32_u24 v10, 896, v10
    v_and_b32 v11, 3, v1
    v_lshl_add_u32 v10, v11, 7, v10
    s_mov_b64 exec, 0x0fffffff
    buffer_load_dword v253, v10, s[60:63], s9 offen
    s_mov_b64 exec, -1""")
lds_wait(C_WV, 4)
EP, EN, PB, PD = 16, 32, 88, 96
VAL = [i for i in range(16) if i not in (7, 15)]
def featmap(acc):
    for i in range(8): a(f"v_cvt_pk_bf16_f32 v{PB+i}, v{acc+2*i}, v{acc+2*i+1}")
    a(f"{MF32} {vr(PD,16)}, {vr(WP,4)}, {vr(PB,4)}, 0")
    a(f"{MF32} {vr(PD,16)}, {vr(WP+4,4)}, {vr(PB+4,4)}, {vr(PD,16)}")
def featmap2a():
    a(f"v_max_f32 v10, v{PD}, v{PD+1}\n v_min_f32 v12, v{PD}, v{PD+1}")
    for i in range(2, 14, 2):
        a(f"v_max3_f32 v10, v10, v{PD+VAL[i]}, v{PD+VAL[i+1]}\n v_min3_f32 v12, v12, v{PD+VAL[i]}, v{PD+VAL[i+1]}")
    a(f"""v_mov_b32 v11, v10
    v_mov_b32 v13, v12
    v_permlane32_swap_b32 v10, v11
    v_permlane32_swap_b32 v12, v13
    v_max_f32 v10, v10, v11
    v_min_f32 v12, v12, v13
    v_mul_f32 v10, s74, v10
    v_mul_f32 v12, s72, v12""")
    for i in range(8): a(f"v_pk_fma_f32 {vr(EP+2*i,2)}, {vr(PD+2*i,2)}, s[72:73], v[10:11] op_sel_hi:[1,1,0]")
    for i in range(8): a(f"v_pk_fma_f32 {vr(EN+2*i,2)}, {vr(PD+2*i,2)}, s[74:75], v[12:13] op_sel_hi:[1,1,0]")
def featmap2b():
    for E in (EP, EN):
        for i in range(16):
            a(f"v_exp_f32 v{E+i}, v{E+i}" if i in VAL else f"v_mov_b32 v{E+i}, 0")
def kside():
    featmap2a(); featmap2b()
    for E, T in ((EP, PD), (EN, PD + 8)):
        for i in range(4): a(f"v_pk_add_f32 {vr(T+2*i,2)}, {vr(E+4*i,2)}, {vr(E+4*i+2,2)}")
    for T in (PD, PD + 8):
        a(f"v_pk_add_f32 {vr(T,2)}, {vr(T,2)}, {vr(T+2,2)}\n v_pk_add_f32 {vr(T+4,2)}, {vr(T+4,2)}, {vr(T+6,2)}")
    for T in (PD, PD + 8): a(f"v_pk_add_f32 {vr(T,2)}, {vr(T,2)}, {vr(T+4,2)}")
    a(f"""v_add_f32 v10, v{PD}, v{PD+1}
    v_add_f32 v12, v{PD+8}, v{PD+9}
    v_mov_b32 v11, v10
    v_mov_b32 v13, v12
    v_permlane32_swap_b32 v10, v11
    v_permlane32_swap_b32 v12, v13
    v_add_f32 v10, v10, v11
    v_add_f32 v12, v12, v13
    v_rcp_f32 v10, v10
    v_rcp_f32 v12, v12
    v_mul_u32_u24 v15, 72, v8
    v_lshl_add_u32 v15, v9, 3, v15
    v_add_u32 v15, s8, v15""")
    for i in range(8): a(f"v_pk_mul_f32 {vr(EP+2*i,2)}, {vr(EP+2*i,2)}, v[10:11] op_sel_hi:[1,0]")
    for i in range(8): a(f"v_pk_mul_f32 {vr(EN+2*i,2)}, {vr(EN+2*i,2)}, v[12:13] op_sel_hi:[1,0]")
a(f"s_mul_i32 s8, s7, {32*72}\n s_add_u32 s8, s8, {L_PHI}")
featmap(AK)
vg_ = gemm_groups(V_L16, L_WA + 28672, AV, False)
if 'merge' not in OPT:
    a(f"s_setprio {PRK}")
    for g_ in vg_: a.L.extend(g_)
    a(f"s_setprio {PRH}")
    kside()
else:
    for g_ in vg_[:3]: a.L.extend(g_)
    merge(capture(kside), vg_[3:])
for i in range(16): a(f"v_cvt_pk_bf16_f32 v{PD+i}, v{EP+2*i}, v{EP+2*i+1}")
for sg_ in range(2):
    for qd in range(4): a(f"ds_write_b64 v15, {vr(PD+8*sg_+2*qd,2)} offset:{sg_*9216 + 16*qd}")
a(f"""s_mov_b32 s66, 0x8800
s_mov_b32 s67, 0x8800
v_mov_b32 v14, 0x3f803f80
s_lshl_b32 s8, s7, 11
s_add_u32 s8, s8, {L_VX}
v_add_u32 v15, s8, v{V_L16}""")
for i in range(8): a(f"v_cvt_pk_bf16_f32 v{AV+i}, v{AV+2*i}, v{AV+2*i+1}")
for i in range(8): a(f"v_cndmask_b32 v{AV+i}, v{AV+i}, v14, s[66:67]")
a(f"ds_write_b128 v15, {vr(AV,4)}\n ds_write_b128 v15, {vr(AV+4,4)} offset:1024\n s_waitcnt vmcnt(0)")
lds_signal(C_S2)
a(f"""v_lshl_add_u32 v10, v9, 2, v2
v_mul_u32_u24 v10, 72, v10
v_add_u32 v10, v10, v6
s_mul_i32 s8, s7, 9216
s_add_u32 s8, s8, {L_PHI}
v_add_u32 v10, s8, v10
v_add_u32 v11, {L_VX}, v{V_L16}""")
lds_wait(C_S2, 4)
stamp(8)
a("""s_cmp_ge_u32 s7, 2
s_cbranch_scc1 L_nokvp""")
def kvp_reads(n):
    b = 16 + 8*(n & 3)
    a(f"ds_read_b64_tr_b16 {vr(b,2)}, v10 offset:{16*n*72}")
    a(f"ds_read_b64_tr_b16 {vr(b+2,2)}, v10 offset:{(16*n+8)*72}")
    a(f"ds_read_b128 {vr(b+4,4)}, v11 offset:{1024*n}")
for n in range(3): kvp_reads(n)
a(f"s_setprio {PRP}")
for n in range(8):
    if n + 3 < 8: kvp_reads(n + 3)
    a(f"s_waitcnt lgkmcnt({3*min(3, 7 - n)})")
    b = 16 + 8*(n & 3)
    a(f"{MF32} {vr(AK,16)}, {vr(b,4)}, {vr(b+4,4)}, {'0' if n == 0 else vr(AK,16)}")
a(f"""s_setprio {PRH}
s_lshl_b32 s8, s5, 1
s_add_u32 s8, s8, s7
s_lshl_b32 s11, s8, 5
s_add_u32 s11, s11, s4
s_lshl_b32 s11, s11, 2
s_add_u32 s11, s11, {FL2}
s_lshl_b32 s8, s8, 5
s_add_u32 s8, s8, s4
s_lshl_b32 s8, s8, 10
s_add_u32 s8, s8, {KVP}
s_add_u32 s9, s8, 16384
v_mov_b32 v{AK+7}, 0
v_mov_b32 v{AK+15}, 0""")
publish_o(AK, PB, (8, 9, 0), 11)
a.label("L_nokvp")
if 'pro' not in OPT: stamp(2)
def wo_setup(ptr, lbase, lstride):
    srd(52, ptr, 401408)
    a(f"""s_mul_i32 s8, s7, {112*896}
    s_lshl_b32 s9, s78, 7
    s_add_u32 s8, s8, s9
    s_mul_i32 s9, s7, {lstride}
    s_add_u32 s9, s9, {lbase}""")
def wo_one():
    a("""s_mov_b32 m0, s9
    s_addk_i32 s9, 1024
    buffer_load_dwordx4 v247, s[52:55], s8 offen lds
    s_addk_i32 s8, 7168""")
wo_setup(22, L_WOA, 14336)
a(f"""v_add_u32 v10, {L_WA + 2*28672}, v{V_L16}
v_lshlrev_b32 v3, 7, v1
s_lshl_b32 s79, s5, 1
s_lshr_b32 s10, s7, 1
s_add_u32 s79, s79, s10
s_lshl_b32 s79, s79, 7
s_add_u32 s79, s79, {FL2}
s_mov_b32 s34, s42
s_mov_b32 s35, s42
s_setprio {PRL}""")
for s_, g_ in enumerate(gemm_groups(10, 0, AK, True)):
    a.L.extend(g_)
    if s_ < 14: wo_one()
a(f"s_setprio {PRH}")
if 'pro' not in OPT: stamp(3)
a(f"""s_lshl_b32 s12, s5, 2
s_add_u32 s12, s12, s7
s_lshl_b32 s12, s12, 14
s_add_u32 s12, s12, {KVP}
s_add_u32 s13, s12, 4096
s_add_u32 s14, s12, 8192
s_add_u32 s15, s12, 12288
s_mov_b32 s76, 0xffff""")
spoll([79], 16)
stamp(9)
LB = 176
def kvp_loads(g0):
    for g in range(g0, 4):
        for i in range(4): a(f"buffer_load_dwordx4 {vr(LB+16*g+4*i,4)}, v{V_L16}, s[48:51], s{12+g} offen offset:{1024*i} sc1")
kvp_loads(0)
a(f"v_mov_b32 v14, v{AK+12}\n v_mov_b32 v15, v{AK+12}\n s_mov_b32 s70, 0")
featmap(AK)
ACC, WB = 48, 112
a(f"""v_permlane32_swap_b32 v14, v15
v_mul_f32 v15, s74, v15
v_exp_f32 v14, v15
s_lshl_b32 s8, s7, 7
s_add_u32 s8, s8, {L_MISC + M_G}
v_add_f32 v14, 1.0, v14
v_rcp_f32 v14, v14
v_lshl_add_u32 v11, v8, 2, s8
v_sub_f32 v15, 1.0, v14
ds_write_b32 v11, v15
v_mul_u32_u24 v10, 7, v9
v_add_u32 v11, v10, v2
v_lshl_add_u32 v4, v11, 7, v6
v_min_u32 v11, 2, v2
v_add_u32 v11, v11, v10
v_add_u32 v11, 4, v11
v_lshl_add_u32 v5, v11, 7, v6
s_mul_i32 s8, s7, 14336
v_add_u32 v4, s8, v4
v_add_u32 v5, s8, v5""")
def wo_frag(ks):
    for ct in range(2):
        off = (28*(ks >> 1) + 14*(ks & 1))*128 + 64*ct
        b = WB + 8*ks + 4*ct
        a(f"ds_read_b64_tr_b16 {vr(b,2)}, v4 offset:{off}")
        a(f"ds_read_b64_tr_b16 {vr(b+2,2)}, v5 offset:{off}")
    if ks & 1: a("s_waitcnt lgkmcnt(4)")
a("s_waitcnt vmcnt(16)")
merge(capture(featmap2a), groups([(lambda k=k: wo_frag(k)) for k in range(8)]))
wo_setup(32, L_WOA, 14336)
a("""v_lshrrev_b32 v11, 3, v8
v_cmp_eq_u32 vcc, v11, v9
v_and_b32 v12, 1, v1
v_lshlrev_b32 v12, 4, v12
v_mov_b32 v13, 0x3f80
v_lshlrev_b32 v12, v12, v13
v_cndmask_b32 v12, 0, v12, vcc
v_bfe_u32 v11, v1, 1, 2""")
for i in range(4):
    a(f"v_cmp_eq_u32 vcc, {i}, v11\n v_cndmask_b32 v{PB+i}, 0, v12, vcc")
def check(name, regs, cnt, reload):
    a.label(f"L_w{name}")
    a(f"s_waitcnt vmcnt({cnt})")
    for r in regs: a(f"v_xor_b32 v{r}, s39, v{r}")
    if len(regs) == 2: a(f"v_or_b32 v10, v{regs[0]}, v{regs[1]}")
    else: a(f"v_or3_b32 v10, v{regs[0]}, v{regs[1]}, v{regs[2]}\n v_or_b32 v10, v10, v{regs[3]}")
    a(f"v_cmp_lt_u32 vcc, s76, v10\n s_cbranch_vccnz L_r{name}")
    a.label(f"L_k{name}")
    def stub():
        a.label(f"L_r{name}")
        a(f"""s_add_u32 s70, s70, 1
        s_cmp_ge_u32 s70, {SPIN}
        s_cbranch_scc1 L_k{name}
        s_waitcnt vmcnt(0)
        s_sleep 4""")
        reload()
        a(f"s_branch L_w{name}")
    stubs.append(stub)
def red_group(n):
    def f():
        g = n >> 2
        if n & 3 == 0:
            if 'merge' not in OPT: a(f"s_setprio {PRH}")
            check(f"kv{g}", [LB+16*g+4*i+3 for i in range(4)], 12 - 4*g, lambda: kvp_loads(g))
            if 'merge' not in OPT: a(f"s_setprio {PRL}")
        a(f"{MF32} {vr(AK,16)}, {vr(PB,4)}, {vr(LB+4*n,4)}, {'0' if n == 0 else vr(AK,16)}")
    return f
if 'merge' not in OPT:
    featmap2b()
    a("s_waitcnt lgkmcnt(0)")
    for g in range(4): check(f"kv{g}", [LB+16*g+4*i+3 for i in range(4)], 12 - 4*g, lambda g=g: kvp_loads(g))
    a(f"s_setprio {PRR}")
    for n in range(16):
        a(f"{MF32} {vr(AK,16)}, {vr(PB,4)}, {vr(LB+4*n,4)}, {'0' if n == 0 else vr(AK,16)}")
        if n < 14: wo_one()
    a(f"s_setprio {PRH}")
else:
    merge(capture(featmap2b), groups([red_group(n) for n in range(16)]))
a(f"""s_mov_b32 s66, 0x88000000
s_mov_b32 s67, 0x88000000
v_mov_b32 v13, 0x3f803f80
s_lshl_b32 s8, s7, 10
s_add_u32 s8, s8, {L_KVF}
v_add_u32 v10, s8, v{V_L16}
v_add_u32 v11, {L_KVF}, v{V_L16}""")
for i in range(16): a(f"v_mov_b32 v{AV+i}, 0")
for i in range(4): a(f"v_cvt_pk_bf16_f32 v{PB+4+i}, v{AK+2*i}, v{AK+2*i+1}")
for i in range(4): a(f"v_cndmask_b32 v{PB+4+i}, v{PB+4+i}, v13, s[66:67]")
a(f"ds_write_b128 v10, {vr(PB+4,4)}")
lds_signal(C_S3)
for i in range(8): a(f"v_mov_b32 v{AK+i}, 0")
a(f"""s_lshl_b32 s8, s4, 2
s_add_u32 s8, s8, s7
s_lshl_b32 s8, s8, 4
s_add_u32 s8, s8, s5
s_lshl_b32 s10, s8, 11
s_add_u32 s10, s10, {OA}
s_andn2_b32 s11, s8, 15
s_add_u32 s11, s11, s8
s_lshl_b32 s11, s11, 2
s_add_u32 s11, s11, {FL4}""")
lds_wait(C_S3, 4)
for i in range(4): a(f"ds_read_b128 {vr(PD+4*i,4)}, v11 offset:{1024*i}")
lds_signal(C_AD)
for sg_, E in enumerate((EP, EN)):
    for fr in range(2):
        a(f"s_waitcnt lgkmcnt({4 - 2*sg_ - fr})")
        a(f"{SMF} {vr(AK+16*sg_,16)}, {vr(PD+8*sg_+4*fr,4)}, {vr(E+8*fr,8)}, v{V_IDX}")
a(f"""v_rcp_f32 v10, v{AK+15}
v_rcp_f32 v12, v{AV+15}
v_mov_b32 v13, {f2u(1e-6):#x}
v_fma_f32 v13, v{AK+7}, v10, v13
v_fma_f32 v13, v{AV+7}, v12, v13
v_rcp_f32 v13, v13
s_nop 0
v_mul_f32 v13, v13, v14
v_mul_f32 v10, v10, v13
v_mul_f32 v12, v12, v13""")
for i in range(8): a(f"v_pk_mul_f32 {vr(AK+2*i,2)}, {vr(AK+2*i,2)}, v[10:11] op_sel_hi:[1,0]")
for i in range(8): a(f"v_pk_fma_f32 {vr(AK+2*i,2)}, {vr(AV+2*i,2)}, v[12:13], {vr(AK+2*i,2)} op_sel_hi:[1,0,1]")
a(f"v_mov_b32 v{AK+7}, 0\n v_mov_b32 v{AK+15}, 0")
publish_o(AK, PB, (10, 10, 1024), 11)
stamp(10)
a("s_cmp_ge_u32 s5, 14\n s_cbranch_scc1 L_done")
a(f"""s_mul_i32 s8, s7, 17408
s_add_u32 s8, s8, {L_FR[0]}
s_cmp_eq_u32 s7, 3
s_cselect_b32 s8, {L_FR[3]}, s8
v_mul_u32_u24 v7, 272, v8
v_lshl_add_u32 v7, v9, 4, v7
v_add_u32 v7, s8, v7
v_lshrrev_b32 v10, 2, v1
v_lshlrev_b32 v10, 4, v10
v_and_b32 v11, 3, v1
v_add_u32 v10, v10, v11
v_lshlrev_b32 v3, 7, v10
s_lshl_b32 s79, s4, 2
s_lshl_b32 s9, s77, 1
s_add_u32 s79, s79, s9
s_lshl_b32 s79, s79, 4
s_lshl_b32 s9, s7, 2
s_add_u32 s79, s79, s9""")
def o_loads(k0):
    for ks in range(k0, 8):
        for tt in range(2):
            a(f"buffer_load_dwordx4 {vr(LB+8*ks+4*tt,4)}, v{V_L16}, s[48:51], s{12+tt+2*(ks>>2)} offen offset:{1024*(ks&3)} sc1")
def o_offs(base):
    a(f"""s_lshl_b32 s12, s79, 11
    s_add_u32 s12, s12, {base}
    s_add_u32 s13, s12, 32768
    s_add_u32 s14, s12, 4096
    s_add_u32 s15, s13, 4096""")
def o_mfma(ks, first):
    for tt in range(2):
        for ct in range(2):
            d = vr(ACC + 32*tt + 16*ct, 16)
            a(f"{MF32} {d}, {vr(WB+8*ks+4*ct,4)}, {vr(LB+8*ks+4*tt,4)}, {'0' if first else d}")
a(f"""s_andn2_b32 s8, s79, 15
s_add_u32 s8, s8, s79
s_lshl_b32 s8, s8, 2
s_add_u32 s78, s8, {FL5}
s_add_u32 s77, s78, 128
s_add_u32 s8, s8, {FL4}
s_add_u32 s9, s8, 128""")
o_offs(OA)
spoll([8, 9], 4)
o_loads(0)
stamp(11)
lds_wait(C_AD, 8)
a("s_mov_b32 s70, 0")
for ks in range(8):
    check(f"a{ks}", [LB+8*ks+3, LB+8*ks+7], 14 - 2*ks, lambda ks=ks: o_loads(ks))
    o_mfma(ks, ks == 0)
    wo_frag(ks)
stamp(12)
o_offs(OB)
spoll([78, 77], 4)
o_loads(0)
stamp(14)
a("s_mov_b32 s70, 0\n s_waitcnt lgkmcnt(0)")
for ks in range(8):
    check(f"b{ks}", [LB+8*ks+3, LB+8*ks+7], 14 - 2*ks, lambda ks=ks: o_loads(ks))
    o_mfma(ks, False)
stamp(13)
for tt in range(2):
    for ct in range(2):
        for qd in range(4):
            a(f"ds_write_b128 v7, {vr(ACC+32*tt+16*ct+4*qd,4)} offset:{tt*32*272 + ct*128 + qd*32}")
a("s_waitcnt lgkmcnt(0)")

a.label("L_final")
a("s_cmp_ge_u32 s5, 14\n s_cbranch_scc1 L_done")
srd(52, 36, 1835008)
a(f"""v_lshrrev_b32 v10, 3, v0
v_and_b32 v11, 7, v0
v_mul_u32_u24 v12, 272, v10
v_lshl_add_u32 v12, v11, 5, v12
v_add_u32 v14, {L_FR[3]}, v12
v_add_u32 v12, {L_FR[0]}, v12
v_mul_u32_u24 v13, 896, v10
v_lshl_add_u32 v13, v11, 4, v13
s_and_b32 s8, s5, 1
s_lshl_b32 s9, s4, 1
s_add_u32 s8, s8, s9
s_mul_i32 s8, s8, {64*896}
s_lshr_b32 s9, s5, 1
s_lshl_b32 s9, s9, 7
s_add_u32 s8, s8, s9
s_barrier""")
for wv in range(4):
    vb_, of_ = (12, 17408*wv) if wv < 3 else (14, 0)
    a(f"ds_read_b128 {vr(16+8*wv,4)}, v{vb_} offset:{of_}")
    a(f"ds_read_b128 {vr(20+8*wv,4)}, v{vb_} offset:{of_+16}")
for wv in range(1, 4):
    a(f"s_waitcnt lgkmcnt({6 - 2*wv})")
    for k in range(4): a(f"v_pk_add_f32 {vr(16+2*k,2)}, {vr(16+2*k,2)}, {vr(16+8*wv+2*k,2)}")
for k in range(4): a(f"v_cvt_pk_bf16_f32 v{24+k}, v{16+2*k}, v{17+2*k}")
a("buffer_store_dwordx4 v[24:27], v13, s[52:55], s8 offen")
a(f"""s_or_b32 s8, s2, s3
s_cmp_lg_u32 s8, 0
s_cbranch_scc1 L_done
s_mov_b32 s11, {EPO}""")
flag_store(11)
a.label("L_done")
if STAMP:
    a("s_waitcnt vmcnt(0)")
    stamp(15)
    for i in range(16): a(f"v_mov_b32 v{16+i}, s{80+i}")
    a(f"""s_lshl_b32 s8, s2, 3
    s_add_u32 s8, s8, s3
    s_lshl_b32 s8, s8, 6
    s_add_u32 s8, s8, {STP}
    v_mov_b32 v10, 0
    s_mov_b64 exec, 1
    buffer_store_dwordx4 v[16:19], v10, s[48:51], s8 offen
    buffer_store_dwordx4 v[20:23], v10, s[48:51], s8 offen offset:16
    buffer_store_dwordx4 v[24:27], v10, s[48:51], s8 offen offset:32
    buffer_store_dwordx4 v[28:31], v10, s[48:51], s8 offen offset:48""")
a.label("L_end")
a("s_endpgm")
for st_ in stubs: st_()

problems = a.fix()
for p in problems: print("HAZARD:", p, file=sys.stderr)
head = f"""; generated by gen/gen13.py (own generator script)
; @launch grid=(256,1,1) block=(512,1,1) lds={LDS_BYTES}
.amdgcn_target "amdgcn-amd-amdhsa--gfx950"
.text
.globl {NAME}_kernel
.p2align 8
.type {NAME}_kernel,@function
{NAME}_kernel:
"""
tail = f""".section .rodata,"a"
.p2align 6
.amdhsa_kernel {NAME}_kernel
  .amdhsa_next_free_vgpr 256
  .amdhsa_next_free_sgpr 102
  .amdhsa_accum_offset 256
  .amdhsa_group_segment_fixed_size 0
  .amdhsa_kernarg_size 104
  .amdhsa_user_sgpr_count 2
  .amdhsa_user_sgpr_kernarg_segment_ptr 1
  .amdhsa_system_sgpr_workgroup_id_x 1
.end_amdhsa_kernel
"""
txt = a.text()
if 'cpf' in OPT: txt = txt.replace("CODE_LEFT", "L_codeend - L_cpf0 - 128") + "L_codeend:\n s_endpgm\n"
open(OUT, "w").write(head + txt + tail)
print("wrote", OUT, "instrs", sum(1 for c in a.L if c.states))
```

```python
import sys, struct, math
from asmdsl import Asm

NAME = "gated_mix__linear_kernel_hedgehog__grouped_kv_mqa__prompt"
OPT = {}
OUT = f"cdna_kernels/{NAME}.s"
for x in sys.argv[1:]:
    if x.startswith('--'):
        k, _, v = x[2:].partition('=')
        OPT[k] = v if v else '1'
    else: OUT = x
STAMP = 'stamp' in OPT
NB1 = int(OPT.get('nb1', 1))
GAPS = [int(c) for c in OPT.get('gaps', '3337')]
PRA, PRH, PRL, PRK = [int(c) for c in OPT.get('prio', '1200')]

def f2u(x): return struct.unpack('<I', struct.pack('<f', x))[0]
LOG2E = math.log2(math.e)
CQ = LOG2E / math.sqrt(28.0)

FKV, FRP_, FL2, FL4, FL5, EPO = 0x0, 0x8000, 0x10000, 0x20000, 0xa0000, 0x5f000
WPH = 0x2c0000
FRP = 0xc0000
KV, WR, KVP, OA, OB, STP = 0x60000, 0x100000, 0x300000, 0x400000, 0x600000, 0x800000
WS_SIZE = 0x900000
L_WQ = 114688
L_WKV = 114688
L_DUM = 149504
L_RP = 152576
L_MISC = 162688
L_WA = 0
L_PHI = 86016
L_VX = 104448
L_KVF = 143360
L_WPHI = 147456
L_QF = L_RP
L_WOA = 0
L_WOB = 57344
L_OX = 60416
L_FR = [109568, 126976, 144384, 43008]
C_WA, C_WAQ, C_S2, C_S3, C_KM, C_OX, C_WOA, C_AD = 0, 4, 8, 12, 16, 24, 28, 32
C_M, C_WQ, C_RD, C_WV, C_XF = 36, 40, 44, 48, 52
NI = int(OPT.get('ni', 2))
GP = int(OPT.get('gp', 5))
PRR = int(OPT.get('prr', 0))
PRP = int(OPT.get('prp', 2))
INI = int(OPT.get('ini', 1))
WAA = int(OPT.get('waa', 2))
C_G, C_Q = 56, 60
DEP = int(OPT.get('dep', 2))
PSL = int(OPT.get('psl', 2))
FS = int(OPT.get('fs', 4))
FS2 = int(OPT.get('fs2', 7))
M_NQ, M_G = 128, 640
LDS_BYTES = 163840
SPIN = 100000

a = Asm()
_raw = Asm.__call__
import re as _re
UNPK = [OPT.get('pk', '1') == '0']
def _split_pk(line):
    m = _re.match(r'v_pk_(add|mul|fma)_f32 (.*)$', line.strip())
    if not m or not UNPK[0]: return line
    op, rest = m.groups()
    hi = [1, 1, 1]
    mm = _re.search(r'op_sel_hi:\[([01,]+)\]', rest)
    if mm:
        hi = [int(x) for x in mm.group(1).split(',')] + [1]
        rest = rest[:mm.start()].strip()
    ops = [o.strip() for o in rest.split(',')]
    def el(o, k):
        t, lo = o[0], int(o[2:o.index(':')])
        return f"{t}{lo + k}"
    out = []
    for k in range(2):
        src = [el(o, k if hi[i] else 0) for i, o in enumerate(ops[1:])]
        if op != 'fma' and src[1][0] == 's': src = [src[1], src[0]]
        out.append(f"v_{op}_f32 {el(ops[0], k)}, " + ", ".join(src))
    return "\n".join(out)
def _call(self, text):
    _raw(self, "\n".join(_split_pk(l) for l in text.split("\n")))
Asm.__call__ = _call
uid = [0]
def lab(p):
    uid[0] += 1
    return f"L_{p}_{uid[0]}"
def capture(fn):
    keep = a.L; a.L = []
    fn()
    got = a.L; a.L = keep
    return got
def groups(fn_list):
    return [capture(f) for f in fn_list]
def merge(main, grp, start=0):
    n = len(main) - start
    pos = [start + (i * n) // len(grp) for i in range(len(grp))]
    k = 0
    for i, ins in enumerate(main):
        while k < len(grp) and pos[k] == i:
            a.L.extend(grp[k]); k += 1
        a.L.append(ins)
    assert k == len(grp)
def vr(b, n): return f"v[{b}:{b+n-1}]"
def srd(r, lo, size):
    a(f"""s_mov_b32 s{r}, s{lo}
    s_mov_b32 s{r+1}, s{lo+1}
    s_mov_b32 s{r+2}, {size}
    s_mov_b32 s{r+3}, 0x00020000""")
def stamp(i):
    if STAMP:
        if 'cyc' in OPT:
            if i == 0: a("s_memtime s[100:101]\n s_waitcnt lgkmcnt(0)\n s_mov_b32 s80, 1")
            else: a(f"s_memtime s[98:99]\n s_waitcnt lgkmcnt(0)\n s_sub_u32 s{80+i}, s98, s100")
        else:
            a(f"s_memrealtime s[98:99]\n s_waitcnt lgkmcnt(0)\n s_mov_b32 s{80+i}, s98")

V_IDX, V_L16, V_MISC, V_ONE, V_NON = 240, 241, 242, 243, 248
def poll_issue(vaddr, soff, vd, n=2):
    a(f"buffer_load_dwordx{n} {vr(vd,n)}, v{vaddr}, s[48:51], {soff} offen sc1")
def poll(vaddr, soff, vd, mask=None, n=2, pre=False):
    L, C, D = lab("poll"), lab("pollc"), lab("polld")
    a("s_mov_b32 s70, 0")
    if mask is not None: a(f"s_mov_b64 exec, {mask}")
    if pre: a(f"s_branch {C}")
    a.label(L)
    poll_issue(vaddr, soff, vd, n)
    a.label(C)
    L1 = lab("poll1")
    a(f"""s_waitcnt vmcnt(0)
    v_cmp_ne_u64 vcc, s[42:43], {vr(vd,2)}
    s_cbranch_vccz {D}
    s_mov_b64 s[24:25], vcc
    s_ff1_i32_b64 s71, vcc
    s_lshl_b64 exec, 1, s71""")
    a.label(L1)
    a(f"s_sleep {PSL}")
    poll_issue(vaddr, soff, vd, n)
    a(f"""s_add_u32 s70, s70, 1
    s_cmp_ge_u32 s70, {SPIN}
    s_cbranch_scc1 {D}
    s_waitcnt vmcnt(0)
    v_cmp_ne_u64 vcc, s[42:43], {vr(vd,2)}
    s_cbranch_vccnz {L1}
    s_andn2_b64 s[24:25], s[24:25], exec
    s_cbranch_scc0 {D}
    s_mov_b64 exec, s[24:25]
    s_branch {L}""")
    a.label(D)
    a("s_mov_b64 exec, -1")
def spoll(soffs, n):
    L, D = lab("sp"), lab("spd")
    a("s_mov_b32 s70, 0")
    a.label(L)
    for g, so in enumerate(soffs):
        a(f"s_load_dwordx{n} s[{16+g*n}:{16+g*n+n-1}], s[40:41], s{so} glc")
    a("s_waitcnt lgkmcnt(0)")
    tot = n * len(soffs)
    for k in range(0, tot, 2): a(f"s_xor_b64 s[{16+k}:{17+k}], s[{16+k}:{17+k}], s[34:35]")
    for k in range(2, tot, 2): a(f"s_or_b64 s[16:17], s[16:17], s[{16+k}:{17+k}]")
    a(f"""s_cbranch_scc0 {D}
    s_sleep {PSL}
    s_add_u32 s70, s70, 1
    s_cmp_lt_u32 s70, {SPIN}
    s_cbranch_scc1 {L}""")
    a.label(D)
def lds_signal(c):
    a(f"""s_mov_b64 exec, 1
    ds_add_u32 v{V_MISC}, v{V_ONE} offset:{c}
    s_mov_b64 exec, -1""")
def lds_wait(c, target, vt=244, wide=False, sleep=True):
    L, D = lab("lw"), lab("lwd")
    a("s_mov_b32 s70, 0")
    a.label(L)
    if wide: a(f"ds_read_b64 v[{vt}:{vt+1}], v{V_MISC} offset:{c}")
    else: a(f"ds_read_b32 v{vt}, v{V_MISC} offset:{c}")
    a(f"""s_waitcnt lgkmcnt(0)
    v_readfirstlane_b32 s71, v{vt}
    s_cmp_ge_u32 s71, {target}
    s_cbranch_scc1 {D}""")
    if sleep or 'allsleep' in OPT: a("s_sleep 1")
    a(f"""s_add_u32 s70, s70, 1
    s_cmp_lt_u32 s70, {SPIN*8}
    s_cbranch_scc1 {L}""")
    a.label(D)
def flag_store(sreg, n=2):
    a(f"""v_mov_b32 v246, 0
    s_mov_b64 exec, 1
    buffer_store_dword{'x%d' % n if n > 1 else ''} {vr(V_NON,n) if n > 1 else 'v%d' % V_NON}, v246, s[48:51], s{sreg} offen sc1
    s_mov_b64 exec, -1""")
def nonce_ready():
    a(f"""s_add_u32 s42, s42, 0x7f4a7c15
    s_addc_u32 s43, s43, 0x9e3779b9
    v_mov_b32 v{V_NON}, s42
    v_mov_b32 v{V_NON+1}, s43
    s_lshl_b32 s39, s42, 16""")
def mrow(vd, vsrc, t0, t1):
    a(f"""v_mul_u32_u24 v{t0}, 37, v{vsrc}
    v_lshrrev_b32 v{t0}, 8, v{t0}
    v_mul_u32_u24 v{t1}, 7, v{t0}
    v_sub_u32 v{t1}, v{vsrc}, v{t1}
    v_cmp_eq_u32 vcc, 4, v{t0}
    v_cndmask_b32 v{t0}, v{t0}, v{t1}, vcc
    v_cndmask_b32 v{t1}, v{t1}, 7, vcc
    v_and_b32 v{vd}, 4, v{t1}
    v_add_u32 v{vd}, v{vd}, v{t1}
    v_and_b32 v{t1}, 1, v{t0}
    v_lshl_add_u32 v{vd}, v{t1}, 2, v{vd}
    v_lshrrev_b32 v{t0}, 1, v{t0}
    v_lshl_add_u32 v{vd}, v{t0}, 4, v{vd}""")
def mod7(s):
    a(f"s_sub_u32 s8, s{s}, 7\n s_cmp_ge_u32 s{s}, 7\n s_cselect_b32 s{s}, s8, s{s}")

MF32 = "v_mfma_f32_32x32x16_bf16"
MF16 = "v_mfma_f32_16x16x32_bf16"
SMF = "v_smfmac_f32_32x32x32_bf16"
XF, WF = 112, 224
Q, O, S, KVR = 16, 48, 112, 176

if STAMP:
    for i in range(16): a(f"s_mov_b32 s{80+i}, 0")
stamp(0)
a("""s_load_dwordx16 s[16:31], s[0:1], 0
s_load_dwordx8 s[32:39], s[0:1], 64
s_load_dwordx2 s[40:41], s[0:1], 96
s_cmp_ge_u32 s2, 256
s_cbranch_scc1 L_end
v_lshrrev_b32 v2, 6, v0
v_and_b32 v1, 63, v0
v_readfirstlane_b32 s3, v2""")
a(f"""v_mov_b32 v{V_MISC}, {L_MISC}
v_mov_b32 v18, 0
v_mov_b32 v17, 0
v_lshl_add_u32 v10, v0, 2, v{V_MISC}
v_cmp_gt_u32 vcc, 16, v0
s_and_saveexec_b64 s[8:9], vcc
ds_write_b32 v10, v18
s_mov_b64 exec, -1""")
a("""s_and_b32 s8, s2, 7
s_lshr_b32 s9, s2, 3
s_lshr_b32 s4, s8, 1
s_lshl_b32 s4, s4, 2
s_and_b32 s10, s9, 3
s_add_u32 s4, s4, s10
s_and_b32 s5, s8, 1
s_lshl_b32 s5, s5, 3
s_lshr_b32 s58, s9, 2
s_add_u32 s5, s5, s58
s_lshr_b32 s6, s5, 1
s_and_b32 s7, s3, 3
s_lshl_b32 s10, s10, 1
s_add_u32 s58, s58, s10""")
mod7(58)
a("s_lshr_b32 s13, s3, 2\n s_sub_u32 s13, s3, s13\n s_add_u32 s59, s58, s13")
mod7(59)
a(f"""v_lshlrev_b32 v{V_L16}, 4, v1
v_lshrrev_b32 v5, 3, v1
v_mul_u32_u24 v5, 896, v5
v_lshrrev_b32 v6, 4, v1
v_and_b32 v7, 7, v1
v_xor_b32 v7, v7, v6
v_lshl_add_u32 v3, v7, 4, v5
v_xor_b32 v7, 4, v7
v_lshl_add_u32 v4, v7, 4, v5
v_add_u32 v4, 7168, v4
s_mul_i32 s11, s4, 114688
s_mul_i32 s9, s6, 14336
s_add_u32 s9, s9, s11
s_lshl_b32 s10, s59, 7
s_add_u32 s9, s9, s10
s_lshl_b32 s77, s13, 14
s_lshl_b32 s12, s6, 11
s_add_u32 s77, s77, s12
s_mul_i32 s14, s59, 3584
s_add_u32 s76, s14, {L_WKV}
s_mov_b32 s46, 1835008
s_mov_b32 s47, 0x00020000
s_mov_b32 s62, 25088
s_mov_b32 s63, 0x00020000
s_mov_b32 s55, 0x00020000""")
a(f"""s_lshr_b32 s66, s2, 3
s_mov_b32 s67, s7
s_and_b32 s68, s2, 6
s_lshl_b32 s68, s68, 1
s_and_b32 s69, s2, 1
s_cmp_eq_u32 s67, 3
s_cselect_b32 s15, 1, 3
s_cselect_b32 s10, 0, s67
s_mul_i32 s54, s15, 401408
s_mul_i32 s15, s15, 896
s_mul_i32 s10, s10, 896
s_lshl_b32 s56, s66, 1
s_add_u32 s56, s56, s69
s_lshl_b32 s78, s56, 4
s_lshl_b32 s56, s56, 3
s_mul_i32 s56, s56, s15
s_add_u32 s56, s56, s10
s_mul_i32 s10, s68, 56
s_add_u32 s56, s56, s10
s_lshl_b32 s57, s7, 11
s_add_u32 s57, s57, {L_RP}
v_and_b32 v8, 15, v1
v_min_u32 v7, 13, v8
v_mul_lo_u32 v5, v6, s15
v_lshl_add_u32 v5, v7, 4, v5
s_cmp_lt_u32 s2, 224
s_cselect_b32 s79, 4, 0
s_cmp_eq_u32 s67, 3
s_waitcnt lgkmcnt(0)
s_cselect_b32 s52, s26, s18
s_cselect_b32 s53, s27, s19
s_mov_b32 s44, s16
s_mov_b32 s45, s17
s_cmp_ge_u32 s3, s79
s_cbranch_scc1 L_norp1
s_mov_b32 m0, s57
s_lshl_b32 s10, s15, 2
buffer_load_dwordx4 v5, s[52:55], s56 offen lds
s_add_u32 m0, s57, 1024
s_add_u32 s56, s56, s10
buffer_load_dwordx4 v5, s[52:55], s56 offen lds
s_load_dwordx4 s[72:75], s[34:35], s78""")
a.label("L_norp1")
a(f"""s_load_dwordx2 s[42:43], s[40:41], {EPO}
s_cmp_eq_u32 s3, 3
s_cbranch_scc1 L_w3
s_bitcmp1_b32 s5, 0
s_cselect_b32 s60, s30, s28
s_cselect_b32 s61, s31, s29
s_mov_b32 m0, s76""")
for i in range(4): a(f"buffer_load_dwordx4 v{V_L16}, s[60:63], s14 offen offset:{1024*i} lds")
a("""s_mov_b32 m0, s77
s_add_u32 s10, s77, 1024
buffer_load_dwordx4 v3, s[44:47], s9 offen lds
s_mov_b32 m0, s10
s_nop 0
buffer_load_dwordx4 v4, s[44:47], s9 offen lds
s_branch L_b0""")
a.label("L_w3")
if 'touch2' in OPT:
    a("v_mov_b32 v30, 0\n s_mov_b64 exec, 1")
    for k, p in enumerate((22, 32, 36, 20)):
        a(f"global_load_dword v{44+k}, v30, s[{p}:{p+1}]")
    a("s_mov_b64 exec, -1")
if 'touch' in OPT:
    srd(48, 40, WS_SIZE)
    a(f"""v_lshlrev_b32 v30, 21, v1
    s_lshl_b32 s8, s2, 7
    s_add_u32 s8, s8, 0xe0000
    s_mov_b64 exec, {15 if 'touch4' in OPT else 3}
    buffer_load_dword v31, v30, s[48:51], s8 offen
    s_mov_b64 exec, -1""")
a(f"""s_sub_u32 s8, s2, 224
s_cmp_ge_u32 s8, 16
s_cbranch_scc1 L_b0
s_mov_b32 s60, s20
s_mov_b32 s61, s21
s_mul_i32 s9, s8, 1568
s_mov_b32 m0, s57
s_nop 0
buffer_load_dwordx4 v{V_L16}, s[60:63], s9 offen lds
buffer_load_dwordx4 v{V_L16}, s[60:63], s9 offen offset:1024 lds""")
a.label("L_b0")
a("s_barrier")
srd(48, 40, WS_SIZE)
a(f"""s_mov_b32 s64, 0
s_mov_b32 s65, -1
v_mov_b32 v{V_ONE}, 1
v_mov_b32 v{V_IDX}, 0xdddddddd
s_cmp_lt_u32 s3, 4
s_cbranch_scc1 L_a1""")
a(f"""s_lshl_b32 s8, s7, 1
s_mul_i32 s66, s8, 14336
s_add_u32 s66, s66, s11
s_add_u32 s67, s66, 14336
s_lshl_b32 s68, s7, 12
s_add_u32 s69, s68, 2048
s_cmp_eq_u32 s8, s6
s_cselect_b32 s66, 0x7f000000, s66
s_cselect_b32 s68, {L_DUM}, s68
s_cselect_b32 s56, 0, 16384
s_add_u32 s8, s8, 1
s_cmp_eq_u32 s8, s6
s_cselect_b32 s67, 0x7f000000, s67
s_cselect_b32 s69, {L_DUM}, s69
s_cselect_b32 s57, 0, 16384
s_mov_b32 s13, s58""")
def issue_pos():
    a("s_lshl_b32 s10, s13, 7")
    for n in range(2):
        a(f"""s_mov_b32 m0, s{68+n}
        s_add_u32 s8, s10, s{66+n}
        buffer_load_dwordx4 v3, s[44:47], s8 offen lds
        s_add_u32 m0, s{68+n}, 1024
        s_add_u32 s{68+n}, s{68+n}, s{56+n}
        buffer_load_dwordx4 v4, s[44:47], s8 offen lds""")
    a("""s_add_u32 s13, s13, 1
    s_cmp_eq_u32 s13, 7
    s_cselect_b32 s13, 0, s13""")
if 'cpf' in OPT:
    a("""s_cmp_lg_u32 s3, 7
    s_cbranch_scc1 L_nocpf
    s_cmp_ge_u32 s2, 32
    s_cbranch_scc1 L_nocpf
    s_getpc_b64 s[8:9]
    s_lshr_b32 s10, s2, 3
    s_lshl_b32 s10, s10, 13
    v_lshl_add_u32 v30, v1, 7, s10
    v_cmp_gt_u32 vcc, CODE_LEFT, v30
    s_and_saveexec_b64 s[72:73], vcc
    s_cbranch_execz L_cpf2""")
    a.label("L_cpf0")
    a("global_load_dword v31, v30, s[8:9]")
    a.label("L_cpf2")
    a("s_mov_b64 exec, -1")
    a.label("L_nocpf")
for p in range(NI): issue_pos()
def mini_addrs():
    a(f"""v_lshrrev_b32 v9, 4, v1
    v_lshrrev_b32 v10, 1, v8
    v_xor_b32 v10, v10, v9
    v_lshl_add_u32 v11, v8, 7, s77
    v_lshl_add_u32 v12, v10, 4, v11
    v_xor_b32 v13, 64, v12
    v_lshrrev_b32 v10, 2, v8
    v_lshl_add_u32 v10, v9, 3, v10
    v_mul_u32_u24 v10, 56, v10
    v_and_b32 v11, 3, v1
    v_lshl_add_u32 v14, v11, 3, v10
    v_add_u32 v14, s76, v14
    v_add_u32 v15, s76, v{V_L16}""")
mini_addrs()
stamp(1)
a("s_waitcnt lgkmcnt(0)")
nonce_ready()
a(f"s_waitcnt vmcnt({4*NI})\n s_branch L_mini")

a.label("L_a1")
a("s_setprio 3")
mini_addrs()
a("v_and_b32 v20, 31, v1\n v_lshrrev_b32 v21, 5, v1")
mrow(18, 20, 22, 23)
a(f"""v_lshrrev_b32 v22, 2, v8
v_and_b32 v23, 3, v1
v_lshlrev_b32 v23, 3, v23
v_and_b32 v24, 16, v1
v_lshl_add_u32 v23, v24, 1, v23
v_add_u32 v23, s57, v23
v_lshl_add_u32 v16, v22, 8, v23
v_mul_u32_u24 v25, 56, v21
v_add_u32 v16, v16, v25
v_lshl_add_u32 v22, v21, 2, v22
v_mul_u32_u24 v22, 56, v22
v_add_u32 v26, v22, v23
s_cmp_eq_u32 s67, 2
s_cselect_b64 vcc, -1, 0
v_cndmask_b32 v17, v20, v18, vcc
v_lshlrev_b32 v17, 4, v17
v_mul_u32_u24 v25, 28672, v21
v_add_u32 v17, v17, v25
s_lshl_b32 s56, s67, 4
s_add_u32 s56, s56, s68
s_mul_i32 s56, s56, 28
s_add_u32 s56, s56, s66
s_lshl_b32 s56, s56, 1
s_add_u32 s56, s56, s69
s_lshl_b32 s56, s56, 9
s_add_u32 s56, s56, {WR}
s_add_u32 s57, s56, 57344
s_and_b32 s8, s66, 3
s_add_u32 s8, s8, s68
s_lshl_b32 s8, s8, 2
s_add_u32 s8, s8, s67
s_lshl_b32 s8, s8, 3
s_lshr_b32 s9, s66, 2
s_add_u32 s8, s8, s9
s_lshl_b32 s8, s8, 1
s_add_u32 s8, s8, s69
s_lshl_b32 s78, s8, {FS}
s_add_u32 s78, s78, {FRP}
s_cmp_eq_u32 s67, 0
s_cselect_b32 s66, 0x10000000, 0
s_mov_b32 s67, s66
s_mov_b32 s68, 0xf0000000
s_mov_b32 s69, 0xf0000000
v_lshl_add_u32 v18, v21, 5, v18
v_lshlrev_b32 v27, 4, v18
""")
stamp(1)
a("s_waitcnt lgkmcnt(0)")
nonce_ready()
a("s_waitcnt vmcnt(0)\n s_cmp_lg_u32 s3, 3\n s_cbranch_scc1 L_mini")
a("s_cmp_eq_u32 s79, 0\n s_cbranch_scc1 L_phi")
def rp_piece():
    stamp(11)
    for e in range(2):
        a(f"ds_read_b64_tr_b16 {vr(32+4*e,2)}, v16 offset:{112*e}")
        a(f"ds_read_b64_tr_b16 {vr(34+4*e,2)}, v16 offset:{112*e+1024}")
    for i in range(4): a(f"v_mov_b32 v{28+i}, s{72+i}")
    for i in range(4): a(f"v_cndmask_b32 v{28+i}, 0, v{28+i}, s[66:67]")
    for e in range(2):
        a(f"s_waitcnt lgkmcnt({2 - 2*e})")
        for i in range(4): a(f"v_cndmask_b32 v{32+4*e+i}, v{32+4*e+i}, v{28+i}, s[68:69]")
        a(f"buffer_store_dwordx4 {vr(32+4*e,4)}, v17, s[48:51], s{56+e} offen sc1")
rp_piece()
a("s_branch L_red")

a.label("L_mini")
stamp(2)
XM, WM, DM = 112, 120, 136
for u in range(2):
    a(f"ds_read_b128 {vr(XM+4*u,4)}, v{12+u}")
    for tl in range(2):
        a(f"ds_read_b64_tr_b16 {vr(WM+8*u+4*tl,2)}, v14 offset:{1792*u+32*tl}")
        a(f"ds_read_b64_tr_b16 {vr(WM+8*u+4*tl+2,2)}, v14 offset:{1792*u+32*tl+224}")
a("s_bitcmp1_b32 s5, 0\n s_cbranch_scc1 L_mv")
def mini_mfma(isv):
    for u in range(2):
        a(f"s_waitcnt lgkmcnt({5 - 5*u})")
        for tl in range(2):
            A, B = vr(WM+8*u+4*tl, 4), vr(XM+4*u, 4)
            if isv: A, B = B, A
            a(f"{MF16} {vr(DM+4*tl,4)}, {A}, {B}, {'0' if u == 0 else vr(DM+4*tl,4)}")
mini_mfma(False)
a("s_branch L_mw")
a.label("L_mv")
mini_mfma(True)
a.label("L_mw")
a(f"""s_nop 7
ds_write_b128 v15, {vr(DM,4)} offset:1024
ds_write_b128 v15, {vr(DM+4,4)} offset:2048""")
lds_signal(C_M)
stamp(3)
a("""s_cmp_ge_u32 s3, 4
s_cbranch_scc1 L_helper
s_cmp_eq_u32 s79, 0
s_cbranch_scc1 L_attn0""")
if 'rpd' in OPT: lds_wait(C_RD, 1)
rp_piece()
def zero_init():
    for i in range(64): a(f"v_mov_b32 v{O+i}, 0")
    for i in range(8): a(f"v_mov_b32 v{KVR+56+i}, 0")
    for i in range(16): a(f"v_mov_b32 v{S+48+i}, 0")
a("s_waitcnt vmcnt(0)")
flag_store(78, 2)
stamp(12)
a("s_branch L_attn0")
a.label("L_phi")
a(f"""s_sub_u32 s8, s2, 224
s_cmp_ge_u32 s8, 16
s_cbranch_scc1 L_red
s_lshl_b32 s56, s8, 11
s_add_u32 s56, s56, {WPH}
s_add_u32 s78, s8, 1024
s_lshl_b32 s78, s78, {FS}
s_add_u32 s78, s78, {FRP}
s_mov_b32 s66, 0xf0000000
s_mov_b32 s67, -1
s_waitcnt vmcnt(0)""")
for i in range(4): a(f"ds_read_b64_tr_b16 {vr(32+2*i,2)}, v26 offset:{8*56*i}")
a("s_waitcnt lgkmcnt(0)")
for i in range(8): a(f"v_cndmask_b32 v{32+i}, v{32+i}, 0, {'s[68:69]' if i < 6 else 's[66:67]'}")
a("""buffer_store_dwordx4 v[32:35], v27, s[48:51], s56 offen sc1
buffer_store_dwordx4 v[36:39], v27, s[48:51], s56 offen offset:1024 sc1
s_mov_b32 s79, 4""")

a.label("L_red")
a(f"v_add_u32 v15, {L_WKV + 1024}, v{V_L16}")
a(f"""s_lshl_b32 s72, s4, 2
s_lshr_b32 s9, s6, 1
s_add_u32 s72, s72, s9
s_lshl_b32 s72, s72, 12
s_add_u32 s72, s72, {KV}
s_lshl_b32 s73, s4, 4
s_add_u32 s73, s73, s5
s_lshl_b32 s73, s73, {FS}
s_and_b32 s9, s6, 1
s_lshl_b32 s10, s9, 10
s_addk_i32 s10, 2048
v_add_u32 v18, s10, v27
v_lshlrev_b32 v19, 10, v21
v_lshl_add_u32 v19, v24, 5, v19
v_lshl_add_u32 v19, v8, 4, v19
s_lshl_b32 s10, s9, 8
v_add_u32 v19, s10, v19
s_bitcmp1_b32 s5, 0
s_cselect_b64 vcc, -1, 0
v_cndmask_b32 v18, v19, v18, vcc
v_mov_b32 v42, 0x3f803f80
v_mov_b32 v43, 0x00003f80""")
lds_wait(C_M, 7, sleep=False)
stamp(4)
for c in range(7):
    a(f"ds_read_b128 {vr(112+8*c,4)}, v15 offset:{3584*c}")
    a(f"ds_read_b128 {vr(116+8*c,4)}, v15 offset:{3584*c+1024}")
lds_signal(C_RD)
for c in range(1, 7):
    a(f"s_waitcnt lgkmcnt({13 - 2*c})")
    UNPK[0] = False
    for k in range(4): a(f"v_pk_add_f32 {vr(112+2*k,2)}, {vr(112+2*k,2)}, {vr(112+8*c+2*k,2)}")
    UNPK[0] = OPT.get('pk', '1') == '0'
a("s_cmp_eq_u32 s79, 0\n s_cbranch_scc1 L_red2\n s_waitcnt vmcnt(0)")
flag_store(78, 2)
stamp(12)
a.label("L_red2")
for k in range(4): a(f"v_cvt_pk_bf16_f32 v{32+k}, v{112+2*k}, v{113+2*k}")
a("s_bitcmp1_b32 s5, 0\n s_cbranch_scc1 L_red_v")
a(f"""s_mov_b32 s66, 0
s_mov_b32 s67, 0xffff0000
v_permlane32_swap_b32 v32, v34
v_permlane32_swap_b32 v33, v35
v_cndmask_b32 v36, v34, 0, s[66:67]
v_cndmask_b32 v37, v35, 0, s[66:67]
v_cndmask_b32 v34, v34, v42, s[66:67]
v_cndmask_b32 v35, v35, v43, s[66:67]
buffer_store_dwordx4 v[32:35], v18, s[48:51], s72 offen sc1
v_mov_b32 v40, 0
v_dot2_f32_bf16 v40, v32, v32, v40
v_dot2_f32_bf16 v40, v33, v33, v40
v_dot2_f32_bf16 v40, v36, v36, v40
v_dot2_f32_bf16 v40, v37, v37, v40
v_mov_b32 v41, v40
v_permlane16_swap_b32 v40, v41
v_add_f32 v40, v40, v41
v_mov_b32 v41, v40
v_permlane32_swap_b32 v40, v41
v_add_f32 v40, v40, v41
v_max_u32_dpp v40, v40, v40 row_ror:8 row_mask:0xf bank_mask:0xf
v_max_u32_dpp v40, v40, v40 row_ror:4 row_mask:0xf bank_mask:0xf
v_max_u32_dpp v40, v40, v40 row_ror:2 row_mask:0xf bank_mask:0xf
v_max_u32_dpp v{V_NON+2}, v40, v40 row_ror:1 row_mask:0xf bank_mask:0xf
s_branch L_pub""")
a.label("L_red_v")
a(f"""s_mov_b32 s66, 0x30000000
s_mov_b32 s67, 0x30000000
s_mov_b32 s68, 0xc0000000
s_mov_b32 s69, 0xc0000000
v_permlane16_swap_b32 v32, v34
v_permlane16_swap_b32 v33, v35""")
for k in range(4): a(f"v_cndmask_b32 v{32+k}, v{32+k}, v42, s[66:67]")
for k in range(4): a(f"v_cndmask_b32 v{32+k}, v{32+k}, 0, s[68:69]")
a(f"""buffer_store_dwordx4 v[32:35], v18, s[48:51], s72 offen sc1
v_mov_b32 v{V_NON+2}, 0""")
a.label("L_pub")
a("s_waitcnt vmcnt(0)")
flag_store(73, 3)
lds_signal(C_G)
stamp(13)
a.label("L_attn0")
if 'exitp3' in OPT: a("s_branch L_done")
a(f"""s_setprio 0
v_and_b32 v8, 31, v1
v_lshlrev_b32 v3, {FS}, v1
s_lshl_b32 s78, s7, {6 + FS}
s_andn2_b32 s9, s5, 3
s_add_u32 s9, s9, s7
s_lshl_b32 s9, s9, 6
v_add_u32 v10, s9, v1
s_add_u32 s9, s5, 1024
v_mov_b32 v11, s9
v_cmp_eq_u32 vcc, 15, v1
v_cndmask_b32 v10, v10, v11, vcc
v_lshlrev_b32 v2, {FS}, v10
s_mov_b32 s79, {FRP}
s_mov_b32 s66, 0
s_mov_b32 s67, 0x3fff0000
s_mov_b32 s68, 0x3fffbfff
s_mov_b32 s69, 0x00003fff""")
for i in range(4):
    a(f"""s_add_u32 s8, s7, {i}
    s_and_b32 s8, s8, 3
    s_lshl_b32 s9, s8, 11
    s_add_u32 s9, s9, {L_QF}
    v_add_u32 v{4+i}, s9, v{V_L16}
""")
a(f"""s_lshl_b32 s8, s7, 16
s_add_u32 s8, s8, {KV}
s_add_u32 s52, s40, s8
s_addc_u32 s53, s41, 0
s_mov_b32 s54, 65536
s_mov_b32 s55, 0x00020000
s_mov_b32 s74, 0""")
def wa_dma(slot, mtx):
    lb = L_WQ if slot == 3 else L_WA + slot*28672
    a(f"""s_add_u32 s8, s5, {16*mtx}
    s_mul_i32 s8, s8, 28672
    s_lshl_b32 s9, s7, 10
    s_add_u32 s8, s8, s9
    s_add_u32 s10, s8, {WR}
    s_mov_b32 s13, s58""")
    for p in range(7):
        a(f"""s_lshl_b32 s8, s13, 12
        s_add_u32 m0, s9, {lb + p*4096}
        s_add_u32 s14, s8, s10
        buffer_load_dwordx4 v{V_L16}, s[48:51], s14 offen sc1 lds
        s_add_u32 s13, s13, 1
        s_cmp_eq_u32 s13, 7
        s_cselect_b32 s13, 0, s13""")
lds_wait(C_G, 1)
if 'xg' in OPT: lds_wait(C_XF, 4 * int(OPT['xg']))
stamp(4)
poll(2, "s79", 254, mask="s[66:67]")
stamp(5)
wa_dma(3, 3)
zero_init()
a("s_waitcnt vmcnt(3)")
lds_signal(C_WQ)
a("s_waitcnt vmcnt(0)")
lds_signal(C_WOA)
poll_issue(3, "s78", 250, 3)
a("s_mov_b64 exec, s[68:69]")
poll_issue(2, "s79", 254)
a("s_mov_b64 exec, -1")
lds_wait(C_XF, 8)
poll(3, "s78", 250, n=3, pre=True)
stamp(6)
def kload(kt, soff, imm):
    b = KVR + 16*(kt & 3)
    a(f"buffer_load_dwordx4 {vr(b,4)}, v{V_L16}, s[52:55], {soff} offen offset:{imm} sc1")
    a(f"buffer_load_dwordx4 {vr(b+4,4)}, v{V_L16}, s[52:55], {soff} offen offset:{imm+1024} sc1")
def vload(kt, soff, imm):
    b = KVR + 16*(kt & 3) + 8
    a(f"buffer_load_dwordx4 {vr(b,4)}, v{V_L16}, s[52:55], {soff} offen offset:{imm} sc1")
    a(f"buffer_load_dwordx4 {vr(b+4,4)}, v{V_L16}, s[52:55], {soff} offen offset:{imm+1024} sc1")
a(f"""v_max_u32_dpp v252, v252, v252 row_ror:8 row_mask:0xf bank_mask:0xf
v_max_u32_dpp v252, v252, v252 row_ror:4 row_mask:0xf bank_mask:0xf
v_max_u32_dpp v252, v252, v252 row_ror:2 row_mask:0xf bank_mask:0xf
s_mov_b32 s8, 0x00010001
s_mov_b32 s9, 0x00010001
s_mov_b64 exec, s[8:9]
ds_max_u32 v{V_MISC}, v252 offset:{C_KM+4}
s_mov_b64 exec, -1""")
lds_signal(C_KM)
poll(2, "s79", 254, mask="s[68:69]", pre=True)
wa_dma(0, 1)
kload(0, "s74", 0); vload(0, "s74", 2048)
a("s_addk_i32 s74, 4096")
wa_dma(1, 2)
a("s_waitcnt vmcnt(11)")
lds_signal(C_WA)
for kt in range(1, 4):
    kload(kt, "s74", 0)
    if kt < 3:
        vload(kt, "s74", 2048)
        a("s_addk_i32 s74, 4096")
a("s_waitcnt vmcnt(10)")
lds_signal(C_WV)
lds_wait(C_Q, 4, sleep=False)
for i in range(4):
    a(f"""ds_read_b128 {vr(Q+8*i,4)}, v{4+i}
    ds_read_b128 {vr(Q+8*i+4,4)}, v{4+i} offset:1024""")
a("s_waitcnt lgkmcnt(6)")
stamp(7)
a(f"s_setprio {PRA}\n s_waitcnt vmcnt(10)")

stamp(8)
if STAMP: a("s_memtime s[96:97]\n s_waitcnt lgkmcnt(0)")
def QK(kt, q, part):
    kb = KVR + 16*(kt & 3) + 4*part
    sb = S + 16*q
    a(f"{MF32} {vr(sb,16)}, {vr(kb,4)}, {vr(Q+8*q+4*part,4)}, {'0' if part == 0 else vr(sb,16)}")
def PV(kt, q, part):
    vb = KVR + 16*(kt & 3) + 8 + 4*part
    a(f"{SMF} {vr(O+16*q,16)}, {vr(vb,4)}, {vr(S+16*q+8*part,8)}, v{V_IDX}")
def EX(q, g):
    st = sum(GAPS[:g]); n = GAPS[g]
    for i in range(n):
        sfx = "_e64" if (n & 1 and i == n - 1) else ""
        a(f"v_exp_f32{sfx} v{S+16*q+st+i}, v{S+16*q+st+i}")
QK(0, 0, 0); QK(0, 0, 1)
a("s_mov_b32 s75, 0\n s_waitcnt lgkmcnt(0)\n s_nop 7\n s_nop 0")
a(".p2align 3")
a.label("L_attn")
for kt in range(4):
    for q in range(4):
        nk, nq = (kt, q + 1) if q < 3 else (kt + 1, 0)
        pk, pq = (kt, q - 1) if q > 0 else (kt - 1, 3)
        if q == 3: a("s_waitcnt vmcnt(10)\n s_addk_i32 s74, 4096")
        QK(nk, nq, 0); EX(q, 0)
        QK(nk, nq, 1); EX(q, 1)
        if q == 2: kload(kt, "s76", 0)
        PV(pk, pq, 0); EX(q, 2)
        PV(pk, pq, 1); EX(q, 3)
        if q == 0:
            vload(kt - 1, "s74", 2048)
            a("s_add_u32 s76, s74, 4096")
a("""s_add_u32 s75, s75, 1
s_cmp_lt_u32 s75, 4
s_cbranch_scc1 L_attn""")
PV(3, 3, 0); PV(3, 3, 1)
if STAMP: a("s_memtime s[98:99]\n s_waitcnt lgkmcnt(0)\n s_sub_u32 s94, s98, s96\n s_add_u32 s94, s94, s80")
stamp(9)
for i in range(1, 4):
    a(f"""s_add_u32 s8, s7, {i}
    s_and_b32 s8, s8, 3
    s_mul_i32 s8, s8, 12288
    s_add_u32 s8, s8, {L_OX + (i-1)*4096}
    v_add_u32 v{2+i}, s8, v{V_L16}""")
a("s_setprio 3")
if 'nohelp' not in OPT: lds_wait(C_S3, 4, sleep=False)
for i in range(1, 4):
    for qd in range(4): a(f"ds_write_b128 v{2+i}, {vr(O+16*i+4*qd,4)} offset:{1024*qd}")
lds_signal(C_OX)
if 'pro' not in OPT: stamp(1)
a(f"""s_mul_i32 s8, s7, 12288
s_add_u32 s8, s8, {L_OX}
v_add_u32 v10, s8, v{V_L16}
s_lshl_b32 s8, s7, 7
s_add_u32 s8, s8, {L_MISC + M_G}
v_lshl_add_u32 v11, v8, 2, s8
ds_read_b32 v12, v11
s_lshl_b32 s8, s4, 2
s_add_u32 s8, s8, s7
s_lshl_b32 s8, s8, 4
s_add_u32 s8, s8, s5
s_lshl_b32 s9, s8, 11
s_add_u32 s9, s9, {OB}
s_andn2_b32 s11, s8, 15
s_add_u32 s11, s11, s8
s_lshl_b32 s11, s11, 2
s_add_u32 s11, s11, {FL5}""")
lds_wait(C_OX, 4, sleep=False)
if 'pro' not in OPT: stamp(2)
for i in range(12): a(f"ds_read_b128 {vr(S+4*i,4)}, v10 offset:{1024*i}")
for i in range(3):
    a(f"s_waitcnt lgkmcnt({8 - 4*i})")
    for k in range(8): a(f"v_pk_add_f32 {vr(O+2*k,2)}, {vr(O+2*k,2)}, {vr(S+16*i+2*k,2)}")
a(f"""v_rcp_f32 v14, v{O+7}
v_mov_b32 v{O+7}, 0
v_mul_f32 v14, v14, v12""")
def publish_o(src, pk, sdata, sflag):
    for k in range(4): a(f"v_cvt_pk_bf16_f32 v{pk+k}, v{src+2*k}, v{src+2*k+1}")
    a(f"v_or_b32 v{pk+3}, s39, v{pk+3}")
    a(f"buffer_store_dwordx4 {vr(pk,4)}, v{V_L16}, s[48:51], s{sdata[0]} offen sc1")
    for k in range(4, 8): a(f"v_cvt_pk_bf16_f32 v{pk+k}, v{src+2*k}, v{src+2*k+1}")
    a(f"v_or_b32 v{pk+7}, s39, v{pk+7}")
    a(f"buffer_store_dwordx4 {vr(pk+4,4)}, v{V_L16}, s[48:51], s{sdata[1]} offen offset:{sdata[2]} sc1")
    flag_store(sflag, 1)
for k in range(8): a(f"v_pk_mul_f32 {vr(O+2*k,2)}, {vr(O+2*k,2)}, v[14:15] op_sel_hi:[1,0]")
a(f"v_mov_b32 v{O+7}, 0\n v_mov_b32 v{O+15}, 0")
publish_o(O, Q, (9, 9, 1024), 11)
lds_signal(C_AD)
stamp(10)
a("s_branch L_final")

a.label("L_helper")
FA, QA = 12, 32
for p in range(NI, 7): issue_pos()
a(f"""v_and_b32 v8, 31, v1
v_lshrrev_b32 v9, 5, v1
v_lshrrev_b32 v10, 1, v8
v_and_b32 v10, 7, v10
v_xor_b32 v10, v10, v9
s_lshl_b32 s8, s7, 12
v_lshl_add_u32 v11, v8, 7, s8
v_lshl_add_u32 v{FA}, v10, 4, v11
v_xor_b32 v{FA+1}, 32, v{FA}
v_xor_b32 v{FA+2}, 64, v{FA}
v_xor_b32 v{FA+3}, 96, v{FA}
v_and_b32 v2, 15, v1
v_lshrrev_b32 v2, 2, v2
v_and_b32 v6, 3, v1
v_lshlrev_b32 v6, 3, v6
v_and_b32 v10, 16, v1
v_lshl_add_u32 v6, v10, 1, v6
v_add_u32 v7, {L_WQ}, v{V_L16}
s_mov_b32 s68, {f2u(CQ):#x}
s_mov_b32 s69, s68
s_lshl_b32 s8, s7, 11
s_add_u32 s8, s8, {L_QF}
v_add_u32 v4, s8, v{V_L16}
s_lshl_b32 s8, s7, 7
s_add_u32 s8, s8, {L_MISC + M_NQ}
v_lshl_add_u32 v5, v8, 2, s8
s_mov_b32 s72, {f2u(LOG2E):#x}
s_mov_b32 s73, s72
s_mov_b32 s74, {f2u(-LOG2E):#x}
s_mov_b32 s75, s74
s_and_b32 s77, s5, 1
s_lshr_b32 s78, s5, 1
v_lshrrev_b32 v10, 3, v1
v_mul_u32_u24 v10, 896, v10
v_and_b32 v11, 7, v1
v_lshl_add_u32 v247, v11, 4, v10""")
lds_wait(C_M, 7)
stamp(4)
for p in range(7):
    a(f"s_waitcnt vmcnt({4*(6-p)})")
    if p == 4:
        for i in range(4): a(f"v_add_u32 v{FA+i}, 65536, v{FA+i}")
    if p >= 3: a("s_waitcnt lgkmcnt(8)")
    for u in range(4): a(f"ds_read_b128 {vr(XF+16*p+4*u,4)}, v{FA+u} offset:{(p & 3)*16384}")
    if p in (3, 6): lds_signal(C_XF)
stamp(5)
if 'exitp3' in OPT: a("s_branch L_done")
WP = 80
stubs = []
AK, AV = 48, 64
def gemm_fast(vaddr, base, acc, s0, s1, ring, nb):
    def rd(s): a(f"ds_read_b128 {vr(ring+4*(s % nb),4)}, v{vaddr} offset:{base + 1024*s}")
    dpt = nb - 1
    for s in range(s0, min(s1, s0 + dpt)): rd(s)
    for s in range(s0, s1):
        if s + dpt < s1: rd(s + dpt)
        a(f"s_waitcnt lgkmcnt({min(dpt, s1 - 1 - s)})")
        a(f"{MF32} {vr(acc,16)}, {vr(ring+4*(s % nb),4)}, {vr(XF+4*s,4)}, {'0' if s == 0 else vr(acc,16)}")
def gemm_groups(vaddr, base, acc, w_is_a):
    def rd(s): a(f"ds_read_b128 {vr(WF+4*(s&3),4)}, v{vaddr} offset:{base + 1024*s}")
    def mk(s):
        def f():
            if s == 0:
                for k in range(3): rd(k)
            if s + 3 < 28: rd(s + 3)
            a(f"s_waitcnt lgkmcnt({min(3, 27 - s)})")
            A, B = vr(WF+4*(s&3), 4), vr(XF+4*s, 4)
            if not w_is_a: A, B = B, A
            a(f"{MF32} {vr(acc,16)}, {A}, {B}, {'0' if s == 0 else vr(acc,16)}")
        return f
    return groups([mk(s) for s in range(28)])
lds_wait(C_WQ, 4, sleep=False)
stamp(7)
gemm_fast(7, 0, QA, 0, 16, 48, 8)
if 'pro2' in OPT: stamp(1)
lds_wait(C_WOA, 4, sleep=False)
if 'pro2' in OPT: stamp(2)
gemm_fast(7, 0, QA, 16, 28, 48, 8)
if 'pro2' in OPT: stamp(3)
def q_epi():
    for i in range(8): a(f"v_pk_mul_f32 {vr(QA+2*i,2)}, {vr(QA+2*i,2)}, s[68:69]")
    for i in range(8): a(f"v_cvt_pk_bf16_f32 v{Q+i}, v{QA+2*i}, v{QA+2*i+1}")
    a("v_mov_b32 v12, 0\n v_mov_b32 v13, 0")
    for i in range(4):
        a(f"v_dot2_f32_bf16 v12, v{Q+i}, v{Q+i}, v12\n v_dot2_f32_bf16 v13, v{Q+4+i}, v{Q+4+i}, v13")
    a("""v_add_f32 v12, v12, v13
    v_mov_b32 v13, v12
    v_permlane32_swap_b32 v12, v13
    v_add_f32 v12, v12, v13
    v_sqrt_f32 v12, v12""")
q_epi()
a(f"ds_write_b128 v4, {vr(Q,4)}")
lds_wait(C_KM, 4, 244, wide=True, sleep=False)
a(f"""v_sqrt_f32 v245, v245
v_mov_b32 v246, 0x42000000
v_mul_f32 v245, {f2u(-(1.0 + 2.0**-6)):#x}, v245
v_fma_f32 v12, v12, v245, v246
v_cvt_pk_bf16_f32 v12, v12, 0
v_cndmask_b32 v{Q+6}, v{Q+6}, v12, s[64:65]
ds_write_b128 v4, {vr(Q+4,4)} offset:1024""")
lds_signal(C_Q)
stamp(6)
if 'nohelp' in OPT: a("s_branch L_final")
lds_wait(C_WA, 4, sleep=False)
a(f"""s_lshl_b32 s8, s5, 11
s_add_u32 s8, s8, {WPH}
buffer_load_dwordx4 {vr(WP,4)}, v{V_L16}, s[48:51], s8 offen sc1
buffer_load_dwordx4 {vr(WP+4,4)}, v{V_L16}, s[48:51], s8 offen offset:1024 sc1
s_setprio {PRK}""")
gemm_fast(V_L16, L_WA, AK, 0, 28, 16, 8)
a(f"s_setprio {PRH}")
if 'pro' not in OPT: stamp(1)
a("s_waitcnt vmcnt(0)")
wa_dma(2, 0)
if 'nowarm' not in OPT:
    a("""s_lshr_b32 s8, s2, 3
    s_and_b32 s9, s8, 15
    s_lshl_b32 s9, s9, 2
    s_add_u32 s9, s9, s7
    s_mul_i32 s9, s9, 6272
    s_and_b32 s10, s2, 1
    s_lshl_b32 s10, s10, 9
    s_add_u32 s9, s9, s10
    s_bitcmp1_b32 s8, 4
    s_cselect_b32 s60, s32, s22
    s_cselect_b32 s61, s33, s23
    s_mov_b32 s62, 401408
    s_mov_b32 s63, 0x00020000
    v_lshrrev_b32 v10, 2, v1
    v_mul_u32_u24 v10, 896, v10
    v_and_b32 v11, 3, v1
    v_lshl_add_u32 v10, v11, 7, v10
    s_mov_b64 exec, 0x0fffffff
    buffer_load_dword v253, v10, s[60:63], s9 offen
    s_mov_b64 exec, -1""")
lds_wait(C_WV, 4)
EP, EN, PB, PD = 16, 32, 88, 96
VAL = [i for i in range(16) if i not in (7, 15)]
def featmap(acc):
    for i in range(8): a(f"v_cvt_pk_bf16_f32 v{PB+i}, v{acc+2*i}, v{acc+2*i+1}")
    a(f"{MF32} {vr(PD,16)}, {vr(WP,4)}, {vr(PB,4)}, 0")
    a(f"{MF32} {vr(PD,16)}, {vr(WP+4,4)}, {vr(PB+4,4)}, {vr(PD,16)}")
def featmap2a():
    a(f"v_max_f32 v10, v{PD}, v{PD+1}\n v_min_f32 v12, v{PD}, v{PD+1}")
    for i in range(2, 14, 2):
        a(f"v_max3_f32 v10, v10, v{PD+VAL[i]}, v{PD+VAL[i+1]}\n v_min3_f32 v12, v12, v{PD+VAL[i]}, v{PD+VAL[i+1]}")
    a(f"""v_mov_b32 v11, v10
    v_mov_b32 v13, v12
    v_permlane32_swap_b32 v10, v11
    v_permlane32_swap_b32 v12, v13
    v_max_f32 v10, v10, v11
    v_min_f32 v12, v12, v13
    v_mul_f32 v10, s74, v10
    v_mul_f32 v12, s72, v12""")
    for i in range(8): a(f"v_pk_fma_f32 {vr(EP+2*i,2)}, {vr(PD+2*i,2)}, s[72:73], v[10:11] op_sel_hi:[1,1,0]")
    for i in range(8): a(f"v_pk_fma_f32 {vr(EN+2*i,2)}, {vr(PD+2*i,2)}, s[74:75], v[12:13] op_sel_hi:[1,1,0]")
def featmap2b():
    for E in (EP, EN):
        for i in range(16):
            a(f"v_exp_f32 v{E+i}, v{E+i}" if i in VAL else f"v_mov_b32 v{E+i}, 0")
def kside():
    featmap2a(); featmap2b()
    for E, T in ((EP, PD), (EN, PD + 8)):
        for i in range(4): a(f"v_pk_add_f32 {vr(T+2*i,2)}, {vr(E+4*i,2)}, {vr(E+4*i+2,2)}")
    for T in (PD, PD + 8):
        a(f"v_pk_add_f32 {vr(T,2)}, {vr(T,2)}, {vr(T+2,2)}\n v_pk_add_f32 {vr(T+4,2)}, {vr(T+4,2)}, {vr(T+6,2)}")
    for T in (PD, PD + 8): a(f"v_pk_add_f32 {vr(T,2)}, {vr(T,2)}, {vr(T+4,2)}")
    a(f"""v_add_f32 v10, v{PD}, v{PD+1}
    v_add_f32 v12, v{PD+8}, v{PD+9}
    v_mov_b32 v11, v10
    v_mov_b32 v13, v12
    v_permlane32_swap_b32 v10, v11
    v_permlane32_swap_b32 v12, v13
    v_add_f32 v10, v10, v11
    v_add_f32 v12, v12, v13
    v_rcp_f32 v10, v10
    v_rcp_f32 v12, v12
    v_mul_u32_u24 v15, 72, v8
    v_lshl_add_u32 v15, v9, 3, v15
    v_add_u32 v15, s8, v15""")
    for i in range(8): a(f"v_pk_mul_f32 {vr(EP+2*i,2)}, {vr(EP+2*i,2)}, v[10:11] op_sel_hi:[1,0]")
    for i in range(8): a(f"v_pk_mul_f32 {vr(EN+2*i,2)}, {vr(EN+2*i,2)}, v[12:13] op_sel_hi:[1,0]")
a(f"s_mul_i32 s8, s7, {32*72}\n s_add_u32 s8, s8, {L_PHI}")
featmap(AK)
vg_ = gemm_groups(V_L16, L_WA + 28672, AV, False)
if 'merge' not in OPT:
    a(f"s_setprio {PRK}")
    for g_ in vg_: a.L.extend(g_)
    a(f"s_setprio {PRH}")
    kside()
else:
    for g_ in vg_[:3]: a.L.extend(g_)
    merge(capture(kside), vg_[3:])
for i in range(16): a(f"v_cvt_pk_bf16_f32 v{PD+i}, v{EP+2*i}, v{EP+2*i+1}")
for sg_ in range(2):
    for qd in range(4): a(f"ds_write_b64 v15, {vr(PD+8*sg_+2*qd,2)} offset:{sg_*9216 + 16*qd}")
a(f"""s_mov_b32 s66, 0x8800
s_mov_b32 s67, 0x8800
v_mov_b32 v14, 0x3f803f80
s_lshl_b32 s8, s7, 11
s_add_u32 s8, s8, {L_VX}
v_add_u32 v15, s8, v{V_L16}""")
for i in range(8): a(f"v_cvt_pk_bf16_f32 v{AV+i}, v{AV+2*i}, v{AV+2*i+1}")
for i in range(8): a(f"v_cndmask_b32 v{AV+i}, v{AV+i}, v14, s[66:67]")
a(f"ds_write_b128 v15, {vr(AV,4)}\n ds_write_b128 v15, {vr(AV+4,4)} offset:1024\n s_waitcnt vmcnt(0)")
lds_signal(C_S2)
a(f"""v_lshl_add_u32 v10, v9, 2, v2
v_mul_u32_u24 v10, 72, v10
v_add_u32 v10, v10, v6
s_mul_i32 s8, s7, 9216
s_add_u32 s8, s8, {L_PHI}
v_add_u32 v10, s8, v10
v_add_u32 v11, {L_VX}, v{V_L16}""")
lds_wait(C_S2, 4)
stamp(8)
a("""s_cmp_ge_u32 s7, 2
s_cbranch_scc1 L_nokvp""")
def kvp_reads(n):
    b = 16 + 8*(n & 3)
    a(f"ds_read_b64_tr_b16 {vr(b,2)}, v10 offset:{16*n*72}")
    a(f"ds_read_b64_tr_b16 {vr(b+2,2)}, v10 offset:{(16*n+8)*72}")
    a(f"ds_read_b128 {vr(b+4,4)}, v11 offset:{1024*n}")
for n in range(3): kvp_reads(n)
a(f"s_setprio {PRP}")
for n in range(8):
    if n + 3 < 8: kvp_reads(n + 3)
    a(f"s_waitcnt lgkmcnt({3*min(3, 7 - n)})")
    b = 16 + 8*(n & 3)
    a(f"{MF32} {vr(AK,16)}, {vr(b,4)}, {vr(b+4,4)}, {'0' if n == 0 else vr(AK,16)}")
a(f"""s_setprio {PRH}
s_lshl_b32 s8, s5, 1
s_add_u32 s8, s8, s7
s_lshl_b32 s11, s8, 5
s_add_u32 s11, s11, s4
s_lshl_b32 s11, s11, 2
s_add_u32 s11, s11, {FL2}
s_lshl_b32 s8, s8, 5
s_add_u32 s8, s8, s4
s_lshl_b32 s8, s8, 10
s_add_u32 s8, s8, {KVP}
s_add_u32 s9, s8, 16384
v_mov_b32 v{AK+7}, 0
v_mov_b32 v{AK+15}, 0""")
publish_o(AK, PB, (8, 9, 0), 11)
a.label("L_nokvp")
if 'pro' not in OPT: stamp(2)
def wo_setup(ptr, lbase, lstride):
    srd(52, ptr, 401408)
    a(f"""s_mul_i32 s8, s7, {112*896}
    s_lshl_b32 s9, s78, 7
    s_add_u32 s8, s8, s9
    s_mul_i32 s9, s7, {lstride}
    s_add_u32 s9, s9, {lbase}""")
def wo_one():
    a("""s_mov_b32 m0, s9
    s_addk_i32 s9, 1024
    buffer_load_dwordx4 v247, s[52:55], s8 offen lds
    s_addk_i32 s8, 7168""")
wo_setup(22, L_WOA, 14336)
a(f"""v_add_u32 v10, {L_WA + 2*28672}, v{V_L16}
v_lshlrev_b32 v3, 7, v1
s_lshl_b32 s79, s5, 1
s_lshr_b32 s10, s7, 1
s_add_u32 s79, s79, s10
s_lshl_b32 s79, s79, 7
s_add_u32 s79, s79, {FL2}
s_mov_b32 s34, s42
s_mov_b32 s35, s42
s_setprio {PRL}""")
for s_, g_ in enumerate(gemm_groups(10, 0, AK, True)):
    a.L.extend(g_)
    if s_ < 14: wo_one()
a(f"s_setprio {PRH}")
if 'pro' not in OPT: stamp(3)
a(f"""s_lshl_b32 s12, s5, 2
s_add_u32 s12, s12, s7
s_lshl_b32 s12, s12, 14
s_add_u32 s12, s12, {KVP}
s_add_u32 s13, s12, 4096
s_add_u32 s14, s12, 8192
s_add_u32 s15, s12, 12288
s_mov_b32 s76, 0xffff""")
spoll([79], 16)
stamp(9)
LB = 176
def kvp_loads(g0):
    for g in range(g0, 4):
        for i in range(4): a(f"buffer_load_dwordx4 {vr(LB+16*g+4*i,4)}, v{V_L16}, s[48:51], s{12+g} offen offset:{1024*i} sc1")
kvp_loads(0)
a(f"v_mov_b32 v14, v{AK+12}\n v_mov_b32 v15, v{AK+12}\n s_mov_b32 s70, 0")
featmap(AK)
ACC, WB = 48, 112
a(f"""v_permlane32_swap_b32 v14, v15
v_mul_f32 v15, s74, v15
v_exp_f32 v14, v15
s_lshl_b32 s8, s7, 7
s_add_u32 s8, s8, {L_MISC + M_G}
v_add_f32 v14, 1.0, v14
v_rcp_f32 v14, v14
v_lshl_add_u32 v11, v8, 2, s8
v_sub_f32 v15, 1.0, v14
ds_write_b32 v11, v15
v_mul_u32_u24 v10, 7, v9
v_add_u32 v11, v10, v2
v_lshl_add_u32 v4, v11, 7, v6
v_min_u32 v11, 2, v2
v_add_u32 v11, v11, v10
v_add_u32 v11, 4, v11
v_lshl_add_u32 v5, v11, 7, v6
s_mul_i32 s8, s7, 14336
v_add_u32 v4, s8, v4
v_add_u32 v5, s8, v5""")
def wo_frag(ks):
    for ct in range(2):
        off = (28*(ks >> 1) + 14*(ks & 1))*128 + 64*ct
        b = WB + 8*ks + 4*ct
        a(f"ds_read_b64_tr_b16 {vr(b,2)}, v4 offset:{off}")
        a(f"ds_read_b64_tr_b16 {vr(b+2,2)}, v5 offset:{off}")
    if ks & 1: a("s_waitcnt lgkmcnt(4)")
a("s_waitcnt vmcnt(16)")
merge(capture(featmap2a), groups([(lambda k=k: wo_frag(k)) for k in range(8)]))
wo_setup(32, L_WOA, 14336)
a("""v_lshrrev_b32 v11, 3, v8
v_cmp_eq_u32 vcc, v11, v9
v_and_b32 v12, 1, v1
v_lshlrev_b32 v12, 4, v12
v_mov_b32 v13, 0x3f80
v_lshlrev_b32 v12, v12, v13
v_cndmask_b32 v12, 0, v12, vcc
v_bfe_u32 v11, v1, 1, 2""")
for i in range(4):
    a(f"v_cmp_eq_u32 vcc, {i}, v11\n v_cndmask_b32 v{PB+i}, 0, v12, vcc")
def check(name, regs, cnt, reload):
    a.label(f"L_w{name}")
    a(f"s_waitcnt vmcnt({cnt})")
    for r in regs: a(f"v_xor_b32 v{r}, s39, v{r}")
    if len(regs) == 2: a(f"v_or_b32 v10, v{regs[0]}, v{regs[1]}")
    else: a(f"v_or3_b32 v10, v{regs[0]}, v{regs[1]}, v{regs[2]}\n v_or_b32 v10, v10, v{regs[3]}")
    a(f"v_cmp_lt_u32 vcc, s76, v10\n s_cbranch_vccnz L_r{name}")
    a.label(f"L_k{name}")
    def stub():
        a.label(f"L_r{name}")
        a(f"""s_add_u32 s70, s70, 1
        s_cmp_ge_u32 s70, {SPIN}
        s_cbranch_scc1 L_k{name}
        s_waitcnt vmcnt(0)
        s_sleep 4""")
        reload()
        a(f"s_branch L_w{name}")
    stubs.append(stub)
def red_group(n):
    def f():
        g = n >> 2
        if n & 3 == 0:
            if 'merge' not in OPT: a(f"s_setprio {PRH}")
            check(f"kv{g}", [LB+16*g+4*i+3 for i in range(4)], 12 - 4*g, lambda: kvp_loads(g))
            if 'merge' not in OPT: a(f"s_setprio {PRL}")
        a(f"{MF32} {vr(AK,16)}, {vr(PB,4)}, {vr(LB+4*n,4)}, {'0' if n == 0 else vr(AK,16)}")
    return f
if 'merge' not in OPT:
    featmap2b()
    a("s_waitcnt lgkmcnt(0)")
    for g in range(4): check(f"kv{g}", [LB+16*g+4*i+3 for i in range(4)], 12 - 4*g, lambda g=g: kvp_loads(g))
    a(f"s_setprio {PRR}")
    for n in range(16):
        a(f"{MF32} {vr(AK,16)}, {vr(PB,4)}, {vr(LB+4*n,4)}, {'0' if n == 0 else vr(AK,16)}")
        if n < 14: wo_one()
    a(f"s_setprio {PRH}")
else:
    merge(capture(featmap2b), groups([red_group(n) for n in range(16)]))
a(f"""s_mov_b32 s66, 0x88000000
s_mov_b32 s67, 0x88000000
v_mov_b32 v13, 0x3f803f80
s_lshl_b32 s8, s7, 10
s_add_u32 s8, s8, {L_KVF}
v_add_u32 v10, s8, v{V_L16}
v_add_u32 v11, {L_KVF}, v{V_L16}""")
for i in range(16): a(f"v_mov_b32 v{AV+i}, 0")
for i in range(4): a(f"v_cvt_pk_bf16_f32 v{PB+4+i}, v{AK+2*i}, v{AK+2*i+1}")
for i in range(4): a(f"v_cndmask_b32 v{PB+4+i}, v{PB+4+i}, v13, s[66:67]")
a(f"ds_write_b128 v10, {vr(PB+4,4)}")
lds_signal(C_S3)
for i in range(8): a(f"v_mov_b32 v{AK+i}, 0")
a(f"""s_lshl_b32 s8, s4, 2
s_add_u32 s8, s8, s7
s_lshl_b32 s8, s8, 4
s_add_u32 s8, s8, s5
s_lshl_b32 s10, s8, 11
s_add_u32 s10, s10, {OA}
s_andn2_b32 s11, s8, 15
s_add_u32 s11, s11, s8
s_lshl_b32 s11, s11, 2
s_add_u32 s11, s11, {FL4}""")
lds_wait(C_S3, 4)
for i in range(4): a(f"ds_read_b128 {vr(PD+4*i,4)}, v11 offset:{1024*i}")
lds_signal(C_AD)
for sg_, E in enumerate((EP, EN)):
    for fr in range(2):
        a(f"s_waitcnt lgkmcnt({4 - 2*sg_ - fr})")
        a(f"{SMF} {vr(AK+16*sg_,16)}, {vr(PD+8*sg_+4*fr,4)}, {vr(E+8*fr,8)}, v{V_IDX}")
a(f"""v_rcp_f32 v10, v{AK+15}
v_rcp_f32 v12, v{AV+15}
v_mov_b32 v13, {f2u(1e-6):#x}
v_fma_f32 v13, v{AK+7}, v10, v13
v_fma_f32 v13, v{AV+7}, v12, v13
v_rcp_f32 v13, v13
s_nop 0
v_mul_f32 v13, v13, v14
v_mul_f32 v10, v10, v13
v_mul_f32 v12, v12, v13""")
for i in range(8): a(f"v_pk_mul_f32 {vr(AK+2*i,2)}, {vr(AK+2*i,2)}, v[10:11] op_sel_hi:[1,0]")
for i in range(8): a(f"v_pk_fma_f32 {vr(AK+2*i,2)}, {vr(AV+2*i,2)}, v[12:13], {vr(AK+2*i,2)} op_sel_hi:[1,0,1]")
a(f"v_mov_b32 v{AK+7}, 0\n v_mov_b32 v{AK+15}, 0")
publish_o(AK, PB, (10, 10, 1024), 11)
stamp(10)
a("s_cmp_ge_u32 s5, 14\n s_cbranch_scc1 L_done")
a(f"""s_mul_i32 s8, s7, 17408
s_add_u32 s8, s8, {L_FR[0]}
s_cmp_eq_u32 s7, 3
s_cselect_b32 s8, {L_FR[3]}, s8
v_mul_u32_u24 v7, 272, v8
v_lshl_add_u32 v7, v9, 4, v7
v_add_u32 v7, s8, v7
v_lshrrev_b32 v10, 2, v1
v_lshlrev_b32 v10, 4, v10
v_and_b32 v11, 3, v1
v_add_u32 v10, v10, v11
v_lshlrev_b32 v3, 7, v10
s_lshl_b32 s79, s4, 2
s_lshl_b32 s9, s77, 1
s_add_u32 s79, s79, s9
s_lshl_b32 s79, s79, 4
s_lshl_b32 s9, s7, 2
s_add_u32 s79, s79, s9""")
def o_loads(k0):
    for ks in range(k0, 8):
        for tt in range(2):
            a(f"buffer_load_dwordx4 {vr(LB+8*ks+4*tt,4)}, v{V_L16}, s[48:51], s{12+tt+2*(ks>>2)} offen offset:{1024*(ks&3)} sc1")
def o_offs(base):
    a(f"""s_lshl_b32 s12, s79, 11
    s_add_u32 s12, s12, {base}
    s_add_u32 s13, s12, 32768
    s_add_u32 s14, s12, 4096
    s_add_u32 s15, s13, 4096""")
def o_mfma(ks, first):
    for tt in range(2):
        for ct in range(2):
            d = vr(ACC + 32*tt + 16*ct, 16)
            a(f"{MF32} {d}, {vr(WB+8*ks+4*ct,4)}, {vr(LB+8*ks+4*tt,4)}, {'0' if first else d}")
a(f"""s_andn2_b32 s8, s79, 15
s_add_u32 s8, s8, s79
s_lshl_b32 s8, s8, 2
s_add_u32 s78, s8, {FL5}
s_add_u32 s77, s78, 128
s_add_u32 s8, s8, {FL4}
s_add_u32 s9, s8, 128""")
o_offs(OA)
spoll([8, 9], 4)
o_loads(0)
stamp(11)
lds_wait(C_AD, 8)
a("s_mov_b32 s70, 0")
for ks in range(8):
    check(f"a{ks}", [LB+8*ks+3, LB+8*ks+7], 14 - 2*ks, lambda ks=ks: o_loads(ks))
    o_mfma(ks, ks == 0)
    wo_frag(ks)
stamp(12)
o_offs(OB)
spoll([78, 77], 4)
o_loads(0)
stamp(14)
a("s_mov_b32 s70, 0\n s_waitcnt lgkmcnt(0)")
for ks in range(8):
    check(f"b{ks}", [LB+8*ks+3, LB+8*ks+7], 14 - 2*ks, lambda ks=ks: o_loads(ks))
    o_mfma(ks, False)
stamp(13)
for tt in range(2):
    for ct in range(2):
        for qd in range(4):
            a(f"ds_write_b128 v7, {vr(ACC+32*tt+16*ct+4*qd,4)} offset:{tt*32*272 + ct*128 + qd*32}")
a("s_waitcnt lgkmcnt(0)")

a.label("L_final")
a("s_cmp_ge_u32 s5, 14\n s_cbranch_scc1 L_done")
srd(52, 36, 1835008)
a(f"""v_lshrrev_b32 v10, 3, v0
v_and_b32 v11, 7, v0
v_mul_u32_u24 v12, 272, v10
v_lshl_add_u32 v12, v11, 5, v12
v_add_u32 v14, {L_FR[3]}, v12
v_add_u32 v12, {L_FR[0]}, v12
v_mul_u32_u24 v13, 896, v10
v_lshl_add_u32 v13, v11, 4, v13
s_and_b32 s8, s5, 1
s_lshl_b32 s9, s4, 1
s_add_u32 s8, s8, s9
s_mul_i32 s8, s8, {64*896}
s_lshr_b32 s9, s5, 1
s_lshl_b32 s9, s9, 7
s_add_u32 s8, s8, s9
s_barrier""")
for wv in range(4):
    vb_, of_ = (12, 17408*wv) if wv < 3 else (14, 0)
    a(f"ds_read_b128 {vr(16+8*wv,4)}, v{vb_} offset:{of_}")
    a(f"ds_read_b128 {vr(20+8*wv,4)}, v{vb_} offset:{of_+16}")
for wv in range(1, 4):
    a(f"s_waitcnt lgkmcnt({6 - 2*wv})")
    for k in range(4): a(f"v_pk_add_f32 {vr(16+2*k,2)}, {vr(16+2*k,2)}, {vr(16+8*wv+2*k,2)}")
for k in range(4): a(f"v_cvt_pk_bf16_f32 v{24+k}, v{16+2*k}, v{17+2*k}")
a("buffer_store_dwordx4 v[24:27], v13, s[52:55], s8 offen")
a(f"""s_or_b32 s8, s2, s3
s_cmp_lg_u32 s8, 0
s_cbranch_scc1 L_done
s_mov_b32 s11, {EPO}""")
flag_store(11)
a.label("L_done")
if STAMP:
    a("s_waitcnt vmcnt(0)")
    stamp(15)
    for i in range(16): a(f"v_mov_b32 v{16+i}, s{80+i}")
    a(f"""s_lshl_b32 s8, s2, 3
    s_add_u32 s8, s8, s3
    s_lshl_b32 s8, s8, 6
    s_add_u32 s8, s8, {STP}
    v_mov_b32 v10, 0
    s_mov_b64 exec, 1
    buffer_store_dwordx4 v[16:19], v10, s[48:51], s8 offen
    buffer_store_dwordx4 v[20:23], v10, s[48:51], s8 offen offset:16
    buffer_store_dwordx4 v[24:27], v10, s[48:51], s8 offen offset:32
    buffer_store_dwordx4 v[28:31], v10, s[48:51], s8 offen offset:48""")
a.label("L_end")
a("s_endpgm")
for st_ in stubs: st_()

problems = a.fix()
for p in problems: print("HAZARD:", p, file=sys.stderr)
head = f"""; generated by gen/gen13.py (own generator script)
; @launch grid=(256,1,1) block=(512,1,1) lds={LDS_BYTES}
.amdgcn_target "amdgcn-amd-amdhsa--gfx950"
.text
.globl {NAME}_kernel
.p2align 8
.type {NAME}_kernel,@function
{NAME}_kernel:
"""
tail = f""".section .rodata,"a"
.p2align 6
.amdhsa_kernel {NAME}_kernel
  .amdhsa_next_free_vgpr 256
  .amdhsa_next_free_sgpr 102
  .amdhsa_accum_offset 256
  .amdhsa_group_segment_fixed_size 0
  .amdhsa_kernarg_size 104
  .amdhsa_user_sgpr_count 2
  .amdhsa_user_sgpr_kernarg_segment_ptr 1
  .amdhsa_system_sgpr_workgroup_id_x 1
.end_amdhsa_kernel
"""
txt = a.text()
if 'cpf' in OPT: txt = txt.replace("CODE_LEFT", "L_codeend - L_cpf0 - 128") + "L_codeend:\n s_endpgm\n"
open(OUT, "w").write(head + txt + tail)
print("wrote", OUT, "instrs", sum(1 for c in a.L if c.states))
```
